```python
import torch

def _softmax(x, axis=-1):
    return torch.softmax(x, dim=axis)
def _gelu(x):
    return torch.nn.functional.gelu(x, approximate="tanh")
def _silu(x):
    return torch.nn.functional.silu(x)
def _sigmoid(x):
    return torch.sigmoid(x)
def _layernorm(x, axis=-1, eps=1e-5):
    m = x.mean(dim=axis, keepdim=True)
    v = x.var(dim=axis, keepdim=True, unbiased=False)
    return (x - m) / torch.sqrt(v + eps)
def _scatter_add(tgt, idx, src, axis=0):
    return tgt.clone().index_add_(axis, idx, src)
def _segment_sum(src, seg, n):
    out = torch.zeros((n,) + src.shape[1:], dtype=src.dtype)
    return out.index_add_(0, seg, src)
def _pad(x, pw):
    flat = tuple(v for pair in reversed(pw) for v in pair)
    return torch.nn.functional.pad(x, flat)

kernel_name = 'gated_mix__linear_attn_block__glu_gated_glu__prompt'

def setup_inputs():

    _w = (lambda a: (lambda t: t.to(torch.bfloat16) if t.is_floating_point() else t)(torch.as_tensor(a)))
    def _A_setup():
        B, S, D = 1, 2048, 640
        return {
            "x": _w((lambda *s: torch.randn(*s, dtype=torch.bfloat16) * 0.05)(B, S, D)),
            "wqkv": _w((lambda *s: torch.randn(*s, dtype=torch.bfloat16) * 0.8)(D, 3 * D)),
            "wo": _w((lambda *s: torch.randn(*s, dtype=torch.bfloat16) * 0.2)(D, D)),
        }
    _A_in = _A_setup()

    def _B_setup():
        B, S, D, F = 1, 2048, 640, 1536
        return {
            "x": _w((lambda *s: torch.randn(*s, dtype=torch.bfloat16) * 0.05)(B, S, D)),
            "w_gate": _w((lambda *s: torch.randn(*s, dtype=torch.bfloat16) * 0.4)(D, F)),
            "w_up": _w((lambda *s: torch.randn(*s, dtype=torch.bfloat16) * 0.05)(D, F)),
            "w_down": _w((lambda *s: torch.randn(*s, dtype=torch.bfloat16) * 0.05)(F, D)),
        }
    _B_in = _B_setup()

    return {
        "A_x": _A_in["x"],
        "A_wqkv": _A_in["wqkv"],
        "A_wo": _A_in["wo"],
        "B_x": _B_in["x"],
        "B_w_gate": _B_in["w_gate"],
        "B_w_up": _B_in["w_up"],
        "B_w_down": _B_in["w_down"],
        "gate_w": _w((lambda *s: torch.randn(*s, dtype=torch.bfloat16) * 0.05)(640) * 16.0),
    }

def reference(A_x, A_wqkv, A_wo, B_x, B_w_gate, B_w_up, B_w_down, gate_w):
    def _A_ref(x, wqkv, wo):
        B, S, D = x.shape
        H = 32; Dh = D // H
        qkv = (lambda x, *d: x.permute(*d))((x @ wqkv).reshape(B, S, 3, H, Dh), 2, 0, 3, 1, 4)
        q, k, v = qkv[0], qkv[1], qkv[2]
        phi = lambda t: torch.where(t > 0, t + 1, torch.exp(t)) + 1e-6
        pq, pk = phi(q), phi(k)
        kv = torch.einsum("bhsd,bhse->bhde", pk, v)
        z = torch.einsum("bhsd->bhd", pk)
        num = torch.einsum("bhqd,bhde->bhqe", pq, kv)
        den = torch.einsum("bhqd,bhd->bhq", pq, z)[..., None] + 1e-6
        o = num / den
        return (lambda x, *d: x.permute(*d))(o, 0, 2, 1, 3).reshape(B, S, D) @ wo

    def _B_ref(x, w_gate, w_up, w_down):
        g = torch.einsum("bsd,df->bsf", x, w_gate)
        u = torch.einsum("bsd,df->bsf", x, w_up)
        h = _sigmoid(g) * u
        return torch.einsum("bsf,fd->bsd", h, w_down)

    x = A_x
    g = _sigmoid((x * gate_w).sum(-1, keepdims=True))
    a = _A_ref(x, A_wqkv, A_wo)
    b = _B_ref(x, B_w_gate, B_w_up, B_w_down)
    return g * a + (1 - g) * b
```

```python
class Asm:
    def __init__(self):
        self.lines = []
        self.lbl = 0
    def __call__(self, s):
        for l in s.strip("\n").split("\n"):
            self.lines.append("  " + l.strip())
    def label(self, name):
        self.lines.append(name + ":")
    def newlabel(self, p="L"):
        self.lbl += 1
        return "%s_%d" % (p, self.lbl)
    def c(self, s):
        self.lines.append("  ; " + s)
    def text(self):
        return "\n".join(self.lines) + "\n"

def kernel_begin(name):
    return f""".text
.globl {name}
.p2align 8
.type {name},@function
{name}:
"""

def kernel_desc(name, vgpr, accum, sgpr=102):
    return f""".section .rodata,"a"
.p2align 6
.amdhsa_kernel {name}
  .amdhsa_next_free_vgpr {vgpr}
  .amdhsa_next_free_sgpr {sgpr}
  .amdhsa_accum_offset {accum}
  .amdhsa_group_segment_fixed_size 0
  .amdhsa_kernarg_size 88
  .amdhsa_user_sgpr_count 2
  .amdhsa_user_sgpr_kernarg_segment_ptr 1
  .amdhsa_system_sgpr_workgroup_id_x 1
  .amdhsa_float_denorm_mode_32 3
  .amdhsa_float_denorm_mode_16_64 3
.end_amdhsa_kernel
"""
```

```python
import re

REG = re.compile(r'\b([vas])(\d+)\b|\b([vas])\[(\d+):(\d+)\]|\b(vcc|exec|m0|scc)\b')
TRANS = ('v_exp_f32', 'v_log_f32', 'v_rcp_f32', 'v_rsq_f32', 'v_sqrt_f32', 'v_sin_f32', 'v_cos_f32', 'v_rcp_iflag_f32')

def regs(op):
    out = []
    for m in REG.finditer(op):
        if m.group(1):
            out.append((m.group(1), int(m.group(2))))
        elif m.group(3):
            out += [(m.group(3), i) for i in range(int(m.group(4)), int(m.group(5)) + 1)]
        else:
            out.append((m.group(6), 0))
    return out

def split_ops(s):
    ops, depth, cur = [], 0, ''
    for ch in s:
        if ch == '[': depth += 1
        if ch == ']': depth -= 1
        if ch == ',' and depth == 0:
            ops.append(cur.strip()); cur = ''
        else:
            cur += ch
    if cur.strip(): ops.append(cur.strip())
    return ops

class I:
    pass

def parse(line):
    s = line.split(';')[0].strip()
    if not s or s.endswith(':') or s.startswith('.'):
        return None
    parts = s.split(None, 1)
    mn = parts[0]
    rest = parts[1] if len(parts) > 1 else ''
    ops = split_ops(rest)
    i = I(); i.mn = mn; i.text = s
    i.w = []; i.r = []; i.kind = 'other'; i.ab = []; i.c = []; i.states = 1
    i.storedata = []
    mods = ''
    if ops:
        last = ops[-1].split(None, 1)
        ops[-1] = last[0]
        mods = last[1] if len(last) > 1 else ''
    i.mods = mods
    if mn == 's_nop':
        i.states = int(ops[0], 0) + 1
        i.kind = 'nop'
    elif mn.startswith('v_mfma'):
        i.kind = 'mfma'
        i.passes = 8 if '32x32' in mn else 4
        i.w = regs(ops[0]); i.ab = regs(ops[1]) + regs(ops[2]); i.c = regs(ops[3]); i.r = i.ab + i.c
    elif mn.startswith('v_'):
        i.kind = 'valu'
        nd = 1
        if re.match(r'v_(add|sub|subrev|addc|subb|subbrev)_co_', mn) or mn.startswith('v_mad_u64') or mn.startswith('v_div_scale'):
            nd = 2
        for o in ops[:nd]: i.w += regs(o)
        for o in ops[nd:]: i.r += regs(o)
        if mn.startswith('v_cmpx'): i.w.append(('exec', 0))
        if re.match(r'v_(fmac|pk_fmac|dot2c|mac)', mn) or 'permlane' in mn or mn.startswith('v_writelane'):
            i.r += regs(ops[0])
        if 'permlane' in mn and 'swap' in mn:
            i.w += regs(ops[1])
        if mn.startswith('v_cndmask') and len(ops) == 3:
            i.r.append(('vcc', 0))
        i.trans = any(mn.startswith(t) for t in TRANS)
        i.dpp = '_dpp' in mn or 'row_' in mods or 'quad_perm' in mods
        i.sdwa = '_sdwa' in mn and 'dst_sel:DWORD' not in mods
    elif mn.startswith('ds_'):
        i.kind = 'ds'
        if mn.startswith('ds_read') or mn.startswith('ds_bpermute') or mn.startswith('ds_permute') or mn.startswith('ds_swizzle') or '_rtn' in mn:
            i.w = regs(ops[0])
            for o in ops[1:]: i.r += regs(o)
        else:
            for o in ops: i.r += regs(o)
    elif mn.startswith('buffer_') or mn.startswith('global_'):
        i.kind = 'vmem'
        islds = re.search(r'\blds\b', mods) is not None or '_lds_' in mn
        i.lds = islds
        if 'load' in mn and not islds:
            i.w = regs(ops[0])
            for o in ops[1:]: i.r += regs(o)
        else:
            for o in ops: i.r += regs(o)
            if 'atomic' in mn and 'sc0' in mods and mn.startswith('buffer'):
                i.w = regs(ops[0])
            if 'store' in mn and ('x3' in mn or 'x4' in mn):
                i.storedata = regs(ops[0]) if mn.startswith('buffer') else regs(ops[1])
        if islds: i.r.append(('m0', 0))
    elif mn.startswith('s_'):
        i.kind = 'salu'
        if mn.startswith('s_cmp') or mn.startswith('s_cbranch') or mn in ('s_branch', 's_waitcnt', 's_barrier', 's_endpgm', 's_sleep', 's_setprio', 's_bitcmp0_b32', 's_bitcmp1_b32'):
            for o in ops: i.r += regs(o)
        else:
            i.w = regs(ops[0]) if ops else []
            for o in ops[1:]: i.r += regs(o)
            if 'saveexec' in mn: i.w.append(('exec', 0))
    return i

def need(p, c):
    n = 0
    pw = set(p.w)
    vw = {x for x in pw if x[0] in 'va'}
    sw = {x for x in pw if x[0] not in 'va'}
    cr = set(c.r); cw = set(c.w)
    if p.kind == 'valu':
        if c.kind == 'mfma' and vw & cr: n = max(n, 2)
        if c.kind == 'mfma' and ('exec', 0) in sw: n = max(n, 4)
        if c.kind == 'valu':
            if sw & cr: n = max(n, 4 if c.mn.startswith(('v_readlane', 'v_writelane', 'v_div_fmas')) else 2)
            if c.mn.startswith(('v_readlane', 'v_readfirstlane')) and vw & cr: n = max(n, 1)
            if p.trans and not c.trans and vw & cr: n = max(n, 1)
            if p.trans and c.trans and vw & cr: n = max(n, 1)
            if (c.dpp or 'permlane' in c.mn) and vw & cr: n = max(n, 2)
            if ('exec', 0) in sw and (c.dpp): n = max(n, 5)
            if ('exec', 0) in sw and (c.mn.startswith(('v_readlane', 'v_readfirstlane', 'v_writelane')) or 'permlane' in c.mn): n = max(n, 4)
            if p.sdwa and vw & (cr | cw): n = max(n, 1)
        if c.kind == 'vmem' and sw & cr: n = max(n, 5)
        if c.kind == 'salu' and sw & cr: n = max(n, 1)
        if p.trans and c.kind in ('vmem', 'ds') and vw & cr: n = max(n, 1)
    elif p.kind == 'mfma':
        big = p.passes == 8
        if c.kind == 'mfma':
            if vw & set(c.ab): n = max(n, 12 if big else 8)
            if vw & set(c.c):
                if not (p.w == c.c and p.passes == c.passes): n = max(n, 10 if big else 6)
            if vw & cw and not (vw & set(c.c)):
                n = max(n, 10 if big else 6)
        elif c.kind in ('valu', 'vmem', 'ds'):
            if vw & (cr | cw): n = max(n, 12 if big else 8)
            if c.kind == 'valu' and set(p.c) & cw: n = max(n, 7 if big else 3)
    elif p.kind == 'salu':
        if ('m0', 0) in sw and c.kind == 'vmem' and getattr(c, 'lds', False): n = max(n, 1)
    elif p.kind == 'vmem':
        if p.storedata and set(p.storedata) & cw:
            n = max(n, 2 if c.kind in ('valu', 'mfma') else 1)
    return n

def pad(lines, window=14, verbose=False):
    out = []
    hist = []
    pos = 0
    nins = 0
    for line in lines:
        c = parse(line)
        if c is None:
            out.append(line); continue
        req = 0
        for p, ppos in hist:
            n = need(p, c)
            if n:
                have = pos - ppos - p.states
                if have < n: req = max(req, n - have)
        if req:
            while req > 0:
                k = min(req, 16)
                out.append("  s_nop %d" % (k - 1))
                pos += k; req -= k; nins += 1
        out.append(line)
        hist.append((c, pos))
        pos += c.states
        if c.mn in ('s_branch', 's_endpgm'):
            hist = []
        hist = [(p, pp) for p, pp in hist if pos - pp <= window + 2]
    return out, nins

def check_seq(lines, window=14):
    hist = []; pos = 0; bad = []
    for line in lines:
        c = parse(line)
        if c is None: continue
        for p, ppos in hist:
            n = need(p, c)
            if n and pos - ppos - p.states < n:
                bad.append((p.text, c.text, n, pos - ppos - p.states))
        hist.append((c, pos)); pos += c.states
        hist = [(p, pp) for p, pp in hist if pos - pp <= window + 2]
    return bad

def check_branches(lines, window=14):
    labels = {}
    for n, l in enumerate(lines):
        s = l.split(';')[0].strip()
        if s.endswith(':'): labels[s[:-1]] = n
    bad = []
    for n, l in enumerate(lines):
        c = parse(l)
        if c is None: continue
        if c.mn.startswith('s_cbranch') or c.mn == 's_branch':
            tgt = c.text.split()[-1]
            if tgt in labels:
                lo = max(0, n - 40)
                for k in range(n - 1, lo - 1, -1):
                    ck = parse(lines[k])
                    if ck is not None and ck.mn in ('s_branch', 's_endpgm'):
                        lo = k + 1; break
                seq = lines[lo:n + 1] + lines[labels[tgt]:labels[tgt] + 40]
                head = []
                for x in lines[labels[tgt]:labels[tgt] + 40]:
                    head.append(x)
                    cx = parse(x)
                    if cx is not None and cx.mn in ('s_branch', 's_endpgm'): break
                bad += check_seq(lines[lo:n + 1] + head, window)
    return bad
```

```python
import sys
from asmlib import *
import hazard

AF   = 0
AFSZ = 128 * 68 * 1024
WDF  = 0x880000
MZ   = 0xA60000
WOF  = 0xB50000
KVP  = 0xC90000
GOFF = 0xD80000
CNT  = 0xD82000
WSSZ = 0xD84000
STAMP = 0xE00000
NPART = 16

STG = 53248
GWL = 3 * STG
LDS1 = 163840
OOB = 0x7FFF0000

LOG2E = 0x3FB8AA3B
NLOG2E = 0xBFB8AA3B
EPS = 0x358637BD
ONE_EPS = 0x3F800008

OPT = dict(stamp=0, nomfma=0, nodma=0)
for x in sys.argv[2:]:
    k, v = x.split('=')
    OPT[k] = int(v)

def vr(b, n=4): return f"v[{b}:{b+n-1}]"
def ar(b, n=4): return f"a[{b}:{b+n-1}]"

def srd(a, d, lo, hi, nrec):
    a(f"s_mov_b32 s{d}, s{lo}")
    a(f"s_mov_b32 s{d+1}, s{hi}")
    a(f"s_mov_b32 s{d+2}, {nrec}")
    a(f"s_mov_b32 s{d+3}, 0x00020000")

def stamp(a, idx):
    if OPT['stamp']:
        a(f"s_memrealtime s[{60+2*idx}:{61+2*idx}]")

def stamp_flush(a, n, base, wgreg="s2", wavereg="s42"):
    if not OPT['stamp']: return
    a("s_waitcnt lgkmcnt(0) vmcnt(0)")
    a(f"s_lshl_b32 s58, {wgreg}, 2")
    a(f"s_add_u32 s58, s58, {wavereg}")
    a(f"s_lshl_b32 s58, s58, 6")
    a(f"s_add_u32 s58, s58, {base}")
    a(f"s_mov_b32 s22, 0x10000000")
    a("v_mov_b32 v250, 0")
    for i in range(n):
        a(f"v_mov_b32 v251, s{60+2*i}")
        a(f"buffer_store_dword v251, v250, s[20:23], s58 offen offset:{4*i}")
    a("s_waitcnt vmcnt(0)")

V_GL = 160
V_L = 164
V_DMA = 165
V_TB = 178
V_FB = 180
V_GW = 184
V_EA = 185
V_T = 200
A_SET = [0, 56]
A_GW = [112, 116]

def interleave(a, mfmas, fillers):
    for i, m in enumerate(mfmas):
        if not OPT['nomfma']:
            a(m)
        for f in fillers.get(i, []):
            a(f)
    for p in sorted(k for k in fillers if k >= len(mfmas)):
        for f in fillers[p]: a(f)

def mainloop(a, T):
    NT, NF = T['NT'], T['NF']
    name = T['name']
    def reads(ks, st):
        base = A_SET[st]
        r = []
        tok = [f"ds_read_b128 {ar(base+4*t)}, v{V_TB+ks} offset:{t*2048}" for t in range(NT)]
        fea = []
        for f in range(NF):
            vb, imm = T['fread'](f)
            for hh in range(2):
                fea.append(f"ds_read_b64_tr_b16 {ar(base+4*NT+4*f+2*hh, 2)}, v{vb} offset:{imm + ks*T['ksb'] + hh*T['hhb']}")
        r = tok[:1] + fea[:4] + tok[1:2] + fea[4:8] + tok[2:] + fea[8:]
        if T.get('gate'):
            r.append(f"ds_read_b128 {ar(A_GW[st])}, v{V_GW} offset:{ks*64}")
        return r
    def mfmas(st):
        base = A_SET[st]
        m = []
        for (acc, t, f) in T['order']:
            x = ar(base + 4*t); wf = ar(base + 4*NT + 4*f)
            if T['tokrows']:
                m.append(f"v_mfma_f32_16x16x32_bf16 {vr(acc)}, {x}, {wf}, {vr(acc)}")
            else:
                m.append(f"v_mfma_f32_16x16x32_bf16 {vr(acc)}, {wf}, {x}, {vr(acc)}")
        if T.get('gate'):
            m.append(f"v_mfma_f32_16x16x32_bf16 {vr(V_GL)}, {ar(A_GW[st])}, {ar(base)}, {vr(V_GL)}")
        return m
    addr_regs = [V_TB, V_TB+1] + [V_FB+i for i in range(T['nfb'])]
    for variant in ('A', 'B'):
        L = f"L_{name}_{variant}"
        a.label(L)
        a("s_waitcnt lgkmcnt(0)")
        fl = {}
        for i, r in enumerate(reads(1, 1)):
            fl.setdefault(i, []).append(r)
        fl.setdefault(30, []).extend([f"s_cmp_eq_u32 s46, {2*STG}", f"s_cselect_b32 s47, {-2*STG & 0xffffffff}, s59"])
        interleave(a, mfmas(0), fl)
        if variant == 'A':
            a("s_waitcnt vmcnt(13) lgkmcnt(0)" if not OPT['nodma'] else "s_waitcnt lgkmcnt(0)")
        else:
            La, Lb = a.newlabel(), a.newlabel()
            a("s_cmp_eq_u32 s43, 7")
            a(f"s_cbranch_scc0 {La}")
            a("s_waitcnt vmcnt(13) lgkmcnt(0)")
            a(f"s_branch {Lb}")
            a.label(La)
            a(f"s_waitcnt vmcnt({T['nside']}) lgkmcnt(0)")
            a.label(Lb)
        a("s_barrier")
        for r in addr_regs:
            a(f"v_add_u32 v{r}, s47, v{r}")
        if T.get('gate'):
            a(f"v_add_u32 v{V_GW}, 128, v{V_GW}")
        fl = {}
        for i, r in enumerate(reads(0, 0)):
            fl.setdefault(i, []).append(r)
        if variant == 'A':
            if not OPT['nodma']:
                seq = T['dma']()
                for j, (m0, ld) in enumerate(seq):
                    fl.setdefault(2*j, []).append(m0)
                    fl.setdefault(2*j+1, []).append(ld)
            fl.setdefault(30, []).extend(["s_add_u32 s44, s44, 128", f"s_add_u32 s45, s45, {T['wstep']}"])
        elif T['nside']:
            Ls = a.newlabel()
            a("s_cmp_eq_u32 s43, 7")
            a(f"s_cbranch_scc0 {Ls}")
            side_dma(a)
            a.label(Ls)
        fl.setdefault(32, []).extend(["s_add_u32 s46, s46, s47", "s_add_u32 s43, s43, 1"])
        fl.setdefault(36, []).extend([f"s_cmp_lt_u32 s43, {7 if variant == 'A' else 10}"])
        interleave(a, mfmas(1), fl)
        a(f"s_cbranch_scc1 {L}")

def prologue_dma(a, T):
    for st in range(3):
        a(f"s_mov_b32 s46, {st*STG}")
        if not OPT['nodma']:
            for (m0, ld) in T['dma']():
                a(m0); a("s_nop 0"); a(ld)
        a("s_add_u32 s44, s44, 128")
        a(f"s_add_u32 s45, s45, {T['wstep']}")
    a("s_mov_b32 s46, 0")
    a("s_mov_b32 s43, 0")
    a(f"s_mov_b32 s59, {STG}")

def first_reads(a, T):
    if not OPT['nodma']:
        a("s_waitcnt vmcnt(26)")
    a("s_barrier")
    NT, NF = T['NT'], T['NF']
    base = A_SET[0]
    for t in range(NT):
        a(f"ds_read_b128 {ar(base+4*t)}, v{V_TB} offset:{t*2048}")
    for f in range(NF):
        vb, imm = T['fread'](f)
        for hh in range(2):
            a(f"ds_read_b64_tr_b16 {ar(base+4*NT+4*f+2*hh, 2)}, v{vb} offset:{imm + hh*T['hhb']}")
    if T.get('gate'):
        a(f"ds_read_b128 {ar(A_GW[0])}, v{V_GW}")

def zero_acc(a, n):
    for i in range(n):
        a(f"v_mov_b32 v{i}, 0")

def x_voffsets(a, nblk, srow0, xorreg=None):
    t = V_T
    a(f"s_mul_i32 s53, s42, {nblk*8}")
    a(f"v_lshrrev_b32 v{t}, 3, v{V_L}")
    a(f"v_add_u32 v{t}, s53, v{t}")
    a(f"v_and_b32 v{t+1}, 7, v{V_L}")
    a(f"s_movk_i32 s54, 1280")
    for j in range(nblk):
        a(f"v_add_u32 v{t+2}, {8*j}, v{t}")
        a(f"v_bfe_u32 v{t+3}, v{t+2}, 1, 3")
        a(f"v_xor_b32 v{t+3}, v{t+3}, v{t+1}")
        if xorreg is not None:
            a(f"v_xor_b32 v{t+2}, {xorreg}, v{t+2}")
        a(f"v_add_u32 v{t+2}, {srow0}, v{t+2}")
        a(f"v_mul_lo_u32 v{t+2}, v{t+2}, s54")
        a(f"v_lshl_add_u32 v{V_DMA+j}, v{t+3}, 4, v{t+2}")

def tok_bases(a, stokoff):
    t = V_T
    a(f"v_and_b32 v{t}, 15, v{V_L}")
    a(f"v_lshrrev_b32 v{t+1}, 4, v{V_L}")
    a(f"v_lshrrev_b32 v{t+2}, 1, v{t}")
    a(f"v_xor_b32 v{t+2}, v{t+2}, v{t+1}")
    a(f"v_lshlrev_b32 v{t+3}, 7, v{t}")
    a(f"v_add_u32 v{t+3}, {stokoff}, v{t+3}")
    a(f"v_lshl_add_u32 v{V_TB}, v{t+2}, 4, v{t+3}")
    a(f"v_xor_b32 v{V_TB+1}, 64, v{V_TB}")

def lane_grc(a):
    t = V_T
    a(f"v_lshrrev_b32 v{t+8}, 4, v{V_L}")
    a(f"v_bfe_u32 v{t+9}, v{V_L}, 2, 2")
    a(f"v_and_b32 v{t+10}, 3, v{V_L}")
    a(f"v_lshl_add_u32 v{t+11}, v{t+8}, 3, v{t+9}")

def div20(a, dst, src, tmp_s="s54"):
    a(f"v_mul_u32_u24 v{dst}, 3277, v{src}")
    a(f"v_lshrrev_b32 v{dst}, 16, v{dst}")

SIDE_LDS = STG
def side_setup(a):
    t = V_T
    a(f"s_mov_b32 s86, {640*1280}")
    a("s_cmp_lt_u32 s48, 96")
    a("s_cselect_b32 s84, s36, s28")
    a("s_cselect_b32 s85, s37, s29")
    a(f"s_cselect_b32 s86, {1536*1280}, s86")
    a("s_mov_b32 s87, 0x00020000")
    a("s_cselect_b32 s91, 0, 96")
    a("s_cselect_b32 s92, 32, 20")
    a("s_cselect_b64 s[94:95], -1, 0")
    a("s_sub_u32 s91, s48, s91")
    a("s_and_b32 s93, s91, 1")
    a("s_lshr_b32 s91, s91, 1")
    a("s_mul_i32 s88, s91, s92")
    a("s_mul_i32 s88, s88, 1280")
    a("s_mul_i32 s96, s93, 640")
    a("s_add_u32 s88, s88, s96")
    a("s_lshl_b32 s96, s93, 2")
    a("s_add_u32 s96, s96, s42")
    a("s_mul_i32 s97, s96, 48")
    a("s_add_u32 s97, s97, s91")
    a("s_mul_i32 s97, s97, 5120")
    a(f"s_add_u32 s97, s97, {WDF}")
    a("s_lshl_b32 s98, s91, 3")
    a("s_add_u32 s98, s98, s96")
    a("s_mul_i32 s98, s98, 5120")
    a(f"s_add_u32 s98, s98, {WOF}")
    a("s_cmp_lt_u32 s48, 96")
    a("s_cselect_b32 s89, s97, s98")
    a("s_add_u32 s90, s89, 4096")
    a("s_mul_i32 s53, s42, 320")
    a("s_movk_i32 s54, 1280")
    a(f"v_mov_b32 v{t+7}, {OOB}")
    for j in range(5):
        a(f"v_add_u32 v{t}, s53, v{V_L}")
        if j: a(f"v_add_u32 v{t}, {64*j}, v{t}")
        a(f"v_mul_u32_u24 v{t+1}, 1639, v{t}")
        a(f"v_lshrrev_b32 v{t+1}, 16, v{t+1}")
        a(f"v_mul_u32_u24 v{t+2}, 40, v{t+1}")
        a(f"v_sub_u32 v{t+2}, v{t}, v{t+2}")
        a(f"v_bfe_u32 v{t+3}, v{t+1}, 2, 1")
        a(f"v_lshlrev_b32 v{t+3}, 4, v{t+3}")
        a(f"v_lshrrev_b32 v{t+4}, 3, v{t+1}")
        a(f"v_lshl_add_u32 v{t+3}, v{t+4}, 2, v{t+3}")
        a(f"v_and_b32 v{t+4}, 3, v{t+1}")
        a(f"v_add_u32 v{t+3}, v{t+3}, v{t+4}")
        a(f"v_cndmask_b32 v{t+3}, v{t+1}, v{t+3}, s[94:95]")
        a(f"v_cmp_gt_u32 vcc, s92, v{t+3}")
        a(f"v_mul_lo_u32 v{t+3}, v{t+3}, s54")
        a(f"v_lshl_add_u32 v{t+3}, v{t+2}, 4, v{t+3}")
        a(f"v_cndmask_b32 v{V_EA+j}, v{t+7}, v{t+3}, vcc")
    lane_grc(a)
    a("s_mul_i32 s53, s42, 160")
    a(f"s_add_u32 s53, s53, {SIDE_LDS}")
    a(f"v_mul_u32_u24 v{t}, 640, v{t+11}")
    a(f"v_add_u32 v{t}, s53, v{t}")
    a(f"v_lshl_add_u32 v{V_EA+5}, v{t+10}, 4, v{t}")
    a(f"v_lshl_add_u32 v{V_EA+6}, v{t+10}, 3, v{t}")
    a(f"v_lshlrev_b32 v{V_EA+7}, 4, v{V_L}")
    a("s_mul_i32 s99, s42, 5120")
    a(f"s_add_u32 s99, s99, {SIDE_LDS}")

def side_dma(a):
    a("s_mov_b32 m0, s99")
    for j in range(5):
        if j: a("s_addk_i32 m0, 0x400")
        a("s_nop 0")
        a(f"buffer_load_dwordx4 v{V_EA+j}, s[84:87], s88 offen lds")

def side_finish(a):
    for t in range(5):
        for hh in range(2):
            if t < 4:
                a(f"ds_read_b64_tr_b16 {ar(4*t+2*hh, 2)}, v{V_EA+5} offset:{hh*2560 + 64*(t//2) + 8*(t%2)}")
            else:
                a(f"ds_read_b64_tr_b16 {ar(4*t+2*hh, 2)}, v{V_EA+6} offset:{hh*2560 + 128}")
    a("s_waitcnt lgkmcnt(0)")
    for t in range(5):
        if t < 4:
            a(f"buffer_store_dwordx4 {ar(4*t)}, v{V_EA+7}, s[20:23], s89 offen offset:{t*1024}")
        else:
            a(f"buffer_store_dwordx4 {ar(4*t)}, v{V_EA+7}, s[20:23], s90 offen")

def phi8(a, regs, tmp):
    n = len(regs)
    for i in range(0, n, 2):
        a(f"v_pk_mul_f32 {vr(tmp+i,2)}, {vr(regs[i],2)}, s[70:71]")
    for i in range(n):
        a(f"v_exp_f32 v{tmp+i}, v{tmp+i} clamp")
    for i in range(0, n, 2):
        a(f"v_pk_add_f32 {vr(regs[i],2)}, {vr(regs[i],2)}, s[72:73]")
    for i in range(0, n, 2):
        a(f"v_pk_add_f32 {vr(tmp+i,2)}, {vr(tmp+i,2)}, s[74:75]")
    for i in range(n):
        a(f"v_max_f32 v{regs[i]}, v{regs[i]}, v{tmp+i}")

def gen_k1():
    a = Asm()
    t = V_T
    stamp(a, 0)
    a("s_load_dwordx16 s[24:39], s[0:1], 0")
    a("s_load_dwordx2 s[40:41], s[0:1], 80")
    a("s_cmp_ge_u32 s2, 256")
    a("s_cbranch_scc1 L_k1_end")
    a(f"v_and_b32 v{V_L}, 63, v0")
    a(f"v_lshrrev_b32 v{t}, 6, v0")
    a("s_and_b32 s3, s2, 3")
    a(f"v_readfirstlane_b32 s42, v{t}")
    a("s_bfe_u32 s4, s2, 0x10002")
    a("s_lshr_b32 s5, s2, 3")
    a("s_mov_b32 s44, 0")
    a("s_mov_b32 s45, 0")
    a("s_cmp_lt_u32 s5, 8")
    a("s_cbranch_scc1 L_kv")
    a("s_cmp_lt_u32 s5, 12")
    a("s_cbranch_scc1 L_q")

    a("s_sub_u32 s6, s5, 12")
    a("s_mul_i32 s7, s6, 43")
    a("s_lshr_b32 s7, s7, 7")
    a("s_mul_i32 s49, s7, 3")
    a("s_sub_u32 s49, s6, s49")
    a("s_mul_i32 s6, s4, 7")
    a("s_add_u32 s6, s6, s7")
    a("s_cmp_lt_u32 s5, 30")
    a("s_cbranch_scc1 L_gu_dec")
    a("s_mov_b32 s6, 6")
    a("s_sub_u32 s49, s5, 30")
    a("s_lshl_b32 s7, s4, 1")
    a("s_add_u32 s49, s49, s7")
    a("s_cmp_eq_u32 s49, 3")
    a("s_cbranch_scc1 L_sideonly")
    a.label("L_gu_dec")
    a("s_mul_i32 s7, s3, 3")
    a("s_add_u32 s7, s7, s49")
    a("s_mul_i32 s48, s6, 12")
    a("s_add_u32 s48, s48, s7")
    a("s_mul_i32 s55, s6, 160")
    x_voffsets(a, 5, "s55")
    a(f"v_lshrrev_b32 v{t}, 4, v{V_L}")
    a(f"v_bfe_u32 v{t+1}, v{V_L}, 1, 3")
    a(f"v_xor_b32 v{t+1}, v{t+1}, v{t}")
    a(f"v_and_b32 v{t+2}, 1, v{V_L}")
    a(f"v_lshlrev_b32 v{t+2}, 4, v{t+2}")
    a("s_lshl_b32 s53, s42, 4")
    a(f"v_add_u32 v{t}, s53, v{t}")
    a("s_movk_i32 s54, 3072")
    a(f"v_mul_lo_u32 v{t}, v{t}, s54")
    a("s_lshl_b32 s53, s7, 8")
    a(f"v_add3_u32 v{t}, v{t}, v{t+2}, s53")
    for j in range(4):
        if (j >> 1) & 1:
            a(f"v_xor_b32 v{t+3}, 4, v{t+1}")
            a(f"v_lshl_add_u32 v{t+3}, v{t+3}, 5, v{t}")
        else:
            a(f"v_lshl_add_u32 v{t+3}, v{t+1}, 5, v{t}")
        a(f"v_add_u32 v{V_DMA+5+j}, {4*j*3072}, v{t+3}")
    a("s_mul_i32 s50, s42, 5120")
    a("s_lshl_b32 s51, s42, 12")
    a("s_add_u32 s52, s51, 36864")
    a("s_add_u32 s51, s51, 20480")
    a("s_waitcnt lgkmcnt(0)")
    srd(a, 8, 24, 25, 2048*1280)
    srd(a, 12, 32, 33, 640*3072)
    srd(a, 16, 34, 35, 640*3072)
    srd(a, 20, 40, 41, WSSZ)
    def dma_gu():
        s = []
        for j in range(5):
            s.append(("s_add_u32 m0, s46, s50" if j == 0 else "s_addk_i32 m0, 0x400",
                      f"buffer_load_dwordx4 v{V_DMA+j}, s[8:11], s44 offen lds"))
        for j in range(4):
            s.append(("s_add_u32 m0, s46, s51" if j == 0 else "s_addk_i32 m0, 0x400",
                      f"buffer_load_dwordx4 v{V_DMA+5+j}, s[12:15], s45 offen lds"))
        for j in range(4):
            s.append(("s_add_u32 m0, s46, s52" if j == 0 else "s_addk_i32 m0, 0x400",
                      f"buffer_load_dwordx4 v{V_DMA+5+j}, s[16:19], s45 offen lds"))
        return s
    TG = dict(name='gu', NT=5, NF=8, nfb=4, ksb=8192, hhb=1024, wstep=64*3072, tokrows=False, nside=5,
              fread=lambda f: (V_FB + (f % 4), 16384 * (f // 4)), dma=dma_gu,
              order=[((tt*8+f)*4, tt, f) for tt in range(5) for f in range(8)])
    prologue_dma(a, TG)
    stamp(a, 1)
    a("s_lshr_b32 s56, s42, 1")
    a("s_and_b32 s57, s42, 1")
    a("s_mul_i32 s53, s56, 10240")
    tok_bases(a, "s53")
    lane_grc(a)
    a(f"v_and_b32 v{t}, 1, v{t+8}")
    a(f"v_lshl_or_b32 v{t}, v{t}, 2, v{t+9}")
    a(f"v_lshlrev_b32 v{t+1}, 8, v{t+11}")
    a(f"v_lshl_add_u32 v{t+1}, v{t+10}, 3, v{t+1}")
    a(f"v_add_u32 v{t+1}, 20480, v{t+1}")
    a("s_lshl_b32 s53, s57, 2")
    for i in range(4):
        a(f"s_add_u32 s54, s53, {i}")
        a(f"v_xor_b32 v{t+2}, s54, v{t}")
        a(f"v_lshl_add_u32 v{V_FB+i}, v{t+2}, 5, v{t+1}")
    side_setup(a)
    zero_acc(a, 160)
    first_reads(a, TG)
    stamp(a, 2)
    mainloop(a, TG)
    stamp(a, 3)
    a(f"s_mov_b32 s70, {NLOG2E}")
    a(f"s_mov_b32 s71, {NLOG2E}")
    a("s_mov_b32 s72, 1.0")
    a("s_mov_b32 s73, 1.0")
    a("s_mul_i32 s53, s6, 10")
    a("s_mul_i32 s54, s56, 5")
    a("s_add_u32 s53, s53, s54")
    a("s_mul_i32 s54, s53, 68")
    a("s_lshl_b32 s55, s7, 2")
    a("s_add_u32 s54, s54, s55")
    a("s_lshl_b32 s55, s57, 1")
    a("s_add_u32 s54, s54, s55")
    a("s_lshl_b32 s54, s54, 10")
    a("s_nop 4")
    for tt in range(5):
        a(f"s_cmp_ge_u32 s53, {128-tt}")
        a("s_cbranch_scc1 L_gu_epi_done")
        for u in range(2):
            G = (tt*8 + 2*u)*4
            U = (tt*8 + 4 + 2*u)*4
            tm = t + 16*u
            for i in range(0, 8, 2):
                a(f"v_pk_mul_f32 {vr(tm+i,2)}, {vr(G+i,2)}, s[70:71]")
            for i in range(8):
                a(f"v_exp_f32 v{tm+i}, v{tm+i}")
            for i in range(0, 8, 2):
                a(f"v_pk_add_f32 {vr(tm+i,2)}, {vr(tm+i,2)}, s[72:73]")
            for i in range(8):
                a(f"v_rcp_f32 v{tm+i}, v{tm+i}")
            for i in range(0, 8, 2):
                a(f"v_pk_mul_f32 {vr(tm+i,2)}, {vr(tm+i,2)}, {vr(U+i,2)}")
            for i in range(4):
                a(f"v_cvt_pk_bf16_f32 v{tm+8+i}, v{tm+2*i}, v{tm+2*i+1}")
            a(f"buffer_store_dwordx4 {vr(tm+8)}, v{V_EA+7}, s[20:23], s54 offen offset:{u*1024}")
        a(f"s_add_u32 s54, s54, {68*1024}")
    a.label("L_gu_epi_done")
    stamp(a, 4)
    a("s_waitcnt vmcnt(0)")
    a("s_barrier")
    side_finish(a)
    stamp(a, 5)
    stamp_flush(a, 6, STAMP)
    a("s_endpgm")

    a.label("L_sideonly")
    a("s_add_u32 s48, s3, 156")
    a("s_waitcnt lgkmcnt(0)")
    srd(a, 20, 40, 41, WSSZ)
    side_setup(a)
    side_dma(a)
    a(f"v_mov_b32 v{t}, 0")
    a(f"v_mov_b32 v{t+1}, 0")
    a(f"v_mov_b32 v{t+2}, 0")
    a(f"v_mov_b32 v{t+3}, 0")
    a(f"s_mov_b32 s53, {CNT}")
    a(f"buffer_store_dwordx4 {vr(t)}, v{V_EA+7}, s[20:23], s53 offen")
    a(f"buffer_store_dwordx4 {vr(t)}, v{V_EA+7}, s[20:23], s53 offen offset:1024")
    a("s_waitcnt vmcnt(0)")
    a("s_barrier")
    side_finish(a)
    a("s_endpgm")

    def dma_qkv():
        s = []
        for j in range(8):
            s.append(("s_add_u32 m0, s46, s50" if j == 0 else "s_addk_i32 m0, 0x400",
                      f"buffer_load_dwordx4 v{V_DMA+j}, s[8:11], s44 offen lds"))
        for j in range(5):
            s.append(("s_add_u32 m0, s46, s51" if j == 0 else "s_addk_i32 m0, 0x400",
                      f"buffer_load_dwordx4 v{V_DMA+8+j}, s[12:15], s45 offen lds"))
        return s
    def qkv_srds():
        a("s_lshl_b32 s50, s42, 13")
        a("s_mul_i32 s51, s42, 5120")
        a("s_add_u32 s51, s51, 32768")
        a("s_waitcnt lgkmcnt(0)")
        srd(a, 8, 24, 25, 2048*1280)
        srd(a, 12, 26, 27, 640*3840)
        srd(a, 20, 40, 41, WSSZ)
    def w_npi(j):
        a(f"v_add_u32 v{t}, s53, v{V_L}")
        if j: a(f"v_add_u32 v{t}, {64*j}, v{t}")
        div20(a, t+1, t)
        a(f"v_mul_u32_u24 v{t+2}, 20, v{t+1}")
        a(f"v_sub_u32 v{t+2}, v{t}, v{t+2}")
        a(f"v_bfe_u32 v{t+3}, v{t+1}, 3, 1")

    a.label("L_q")
    a("s_sub_u32 s6, s5, 8")
    a("s_lshl_b32 s7, s4, 2")
    a("s_add_u32 s6, s6, s7")
    a("s_lshl_b32 s55, s6, 8")
    a("s_lshl_b32 s56, s3, 4")
    x_voffsets(a, 8, "s55", xorreg="s56")
    a("s_mul_i32 s53, s42, 320")
    a("s_movk_i32 s54, 3840")
    a("s_mul_i32 s57, s3, 320")
    for j in range(5):
        w_npi(j)
        a(f"v_xor_b32 v{t+2}, v{t+2}, v{t+3}")
        a(f"v_lshrrev_b32 v{t+3}, 2, v{t+2}")
        a(f"v_and_b32 v{t+2}, 3, v{t+2}")
        a(f"v_mul_u32_u24 v{t+2}, 80, v{t+2}")
        a(f"v_lshl_add_u32 v{t+2}, v{t+3}, 4, v{t+2}")
        a(f"v_mul_lo_u32 v{t+1}, v{t+1}, s54")
        a(f"v_add3_u32 v{V_DMA+8+j}, v{t+1}, v{t+2}, s57")
    qkv_srds()
    srd(a, 16, 38, 39, 1280)
    a(f"v_lshlrev_b32 v{V_EA+7}, 4, v{V_L}")
    a(f"s_mov_b32 m0, {GWL}")
    a("s_nop 0")
    a(f"buffer_load_dwordx4 v{V_EA+7}, s[16:19], 0 offen lds")
    a(f"buffer_load_dwordx4 v{V_EA+7}, s[16:19], 0 offen offset:1024 lds")
    TQ = dict(name='q', NT=4, NF=10, nfb=2, ksb=10240, hhb=1280, wstep=64*3840, tokrows=False, nside=0, gate=True,
              fread=lambda f: (V_FB + (f % 2), 64 * (f // 2)), dma=dma_qkv,
              order=[((tt*10+f)*4, tt, f) for tt in range(4) for f in range(10)])
    prologue_dma(a, TQ)
    stamp(a, 1)
    a("s_lshl_b32 s53, s42, 13")
    tok_bases(a, "s53")
    lane_grc(a)
    a(f"v_and_b32 v{t}, 1, v{t+8}")
    a(f"v_xor_b32 v{t}, v{t}, v{t+10}")
    a(f"v_mul_u32_u24 v{t+1}, 320, v{t+11}")
    a(f"v_lshl_add_u32 v{t+1}, v{t}, 4, v{t+1}")
    a(f"v_add_u32 v{t+1}, 32768, v{t+1}")
    a(f"v_and_b32 v{t+2}, 1, v{t+10}")
    a(f"v_lshl_add_u32 v{V_FB}, v{t+2}, 3, v{t+1}")
    a(f"v_xor_b32 v{V_FB+1}, 8, v{V_FB}")
    a(f"v_lshlrev_b32 v{V_GW}, 4, v{t+8}")
    a(f"v_add_u32 v{V_GW}, {GWL}, v{V_GW}")
    zero_acc(a, 164)
    first_reads(a, TQ)
    stamp(a, 2)
    mainloop(a, TQ)
    stamp(a, 3)
    a(f"s_mov_b32 s70, {LOG2E}")
    a(f"s_mov_b32 s71, {LOG2E}")
    a(f"s_mov_b32 s72, {ONE_EPS}")
    a(f"s_mov_b32 s73, {ONE_EPS}")
    a(f"s_mov_b32 s74, {EPS}")
    a(f"s_mov_b32 s75, {EPS}")
    a("s_lshl_b32 s53, s6, 4")
    a("s_lshl_b32 s54, s42, 2")
    a("s_add_u32 s53, s53, s54")
    a("s_mul_i32 s55, s3, 5")
    a("s_add_u32 s55, s55, 48")
    a("s_nop 2")
    a(f"v_mul_f32 v{t}, {NLOG2E}, v{V_GL}")
    a(f"v_exp_f32 v{t}, v{t}")
    a(f"v_add_f32 v{t}, 1.0, v{t}")
    a(f"v_rcp_f32 v{t}, v{t}")
    a("s_add_u32 s54, s53, s3")
    a("s_lshl_b32 s54, s54, 6")
    a(f"s_add_u32 s54, s54, {GOFF}")
    a(f"v_lshlrev_b32 v{t+1}, 2, v{V_L}")
    a(f"v_cmp_gt_u32 vcc, 16, v{V_L}")
    a(f"v_mov_b32 v{t+2}, {OOB}")
    a(f"v_cndmask_b32 v{t+1}, v{t+2}, v{t+1}, vcc")
    a(f"buffer_store_dword v{t}, v{t+1}, s[20:23], s54 offen")
    for tt in range(4):
        a(f"s_xor_b32 s54, s3, {tt}")
        a("s_add_u32 s54, s54, s53")
        a("s_mul_i32 s54, s54, 68")
        a("s_add_u32 s54, s54, s55")
        a("s_lshl_b32 s54, s54, 10")
        a("s_add_u32 s56, s54, 4096")
        for i in range(5):
            R = (tt*10 + 2*i)*4
            tm = t + 4 + 16*(i % 2)
            phi8(a, list(range(R, R+8)), tm)
            for d in range(4):
                a(f"v_cvt_pk_bf16_f32 v{tm+8+d}, v{R+2*d}, v{R+2*d+1}")
            if i < 4:
                a(f"buffer_store_dwordx4 {vr(tm+8)}, v{V_EA+7}, s[20:23], s54 offen offset:{i*1024}")
            else:
                a(f"buffer_store_dwordx4 {vr(tm+8)}, v{V_EA+7}, s[20:23], s56 offen")
    stamp(a, 4)
    stamp(a, 5)
    stamp_flush(a, 6, STAMP)
    a("s_endpgm")

    a.label("L_kv")
    a("s_lshr_b32 s6, s5, 1")
    a("s_lshl_b32 s7, s4, 2")
    a("s_add_u32 s6, s6, s7")
    a("s_and_b32 s7, s5, 1")
    a("s_lshl_b32 s49, s3, 1")
    a("s_add_u32 s7, s7, s49")
    a("s_lshl_b32 s55, s6, 8")
    x_voffsets(a, 8, "s55")
    a("s_mul_i32 s53, s42, 320")
    a("s_movk_i32 s54, 3840")
    a("s_mul_i32 s57, s7, 160")
    a("s_add_u32 s57, s57, 1280")
    for j in range(5):
        w_npi(j)
        a(f"v_lshlrev_b32 v{t+3}, 1, v{t+3}")
        a(f"v_xor_b32 v{t+2}, v{t+2}, v{t+3}")
        a(f"v_mul_u32_u24 v{t+3}, 52, v{t+2}")
        a(f"v_lshrrev_b32 v{t+3}, 8, v{t+3}")
        a(f"v_mul_u32_u24 v{t+4}, 5, v{t+3}")
        a(f"v_sub_u32 v{t+2}, v{t+2}, v{t+4}")
        a(f"v_lshlrev_b32 v{t+2}, 4, v{t+2}")
        a(f"v_lshrrev_b32 v{t+4}, 1, v{t+3}")
        a(f"v_mad_u32_u24 v{t+2}, v{t+4}, 64, v{t+2}")
        a(f"v_lshl_add_u32 v{t+2}, v{t+4}, 4, v{t+2}")
        a(f"v_and_b32 v{t+3}, 1, v{t+3}")
        a(f"v_mul_u32_u24 v{t+3}, 1280, v{t+3}")
        a(f"v_add_u32 v{t+2}, v{t+2}, v{t+3}")
        a(f"v_mul_lo_u32 v{t+1}, v{t+1}, s54")
        a(f"v_add3_u32 v{V_DMA+8+j}, v{t+1}, v{t+2}, s57")
    qkv_srds()
    TK = dict(name='kv', NT=8, NF=5, nfb=2, ksb=10240, hhb=1280, wstep=64*3840, tokrows=True, nside=0,
              fread=lambda f: (V_FB + (f % 2), 64 * (f // 2)), dma=dma_qkv,
              order=[((tt*5+f)*4, tt, f) for tt in range(8) for f in range(5)])
    prologue_dma(a, TK)
    stamp(a, 1)
    a("s_lshr_b32 s56, s42, 1")
    a("s_and_b32 s57, s42, 1")
    a("s_lshl_b32 s53, s56, 14")
    tok_bases(a, "s53")
    lane_grc(a)
    a(f"v_and_b32 v{t}, 1, v{t+8}")
    a(f"v_lshlrev_b32 v{t}, 1, v{t}")
    a(f"v_lshrrev_b32 v{t+1}, 1, v{t+10}")
    a("s_mul_i32 s53, s57, 10")
    a(f"v_add_u32 v{t+1}, s53, v{t+1}")
    a(f"v_mul_u32_u24 v{t+2}, 320, v{t+11}")
    a(f"v_and_b32 v{t+3}, 1, v{t+10}")
    a(f"v_lshl_add_u32 v{t+2}, v{t+3}, 3, v{t+2}")
    a(f"v_add_u32 v{t+2}, 32768, v{t+2}")
    for p in range(2):
        a(f"v_add_u32 v{t+3}, {2*p}, v{t+1}")
        a(f"v_xor_b32 v{t+3}, v{t+3}, v{t}")
        a(f"v_lshl_add_u32 v{V_FB+p}, v{t+3}, 4, v{t+2}")
    pairs = [(2,0),(3,0),(2,1),(3,1),(4,1),(3,2),(4,2),(None,0),(None,1),(None,2)]
    a(f"v_and_b32 v{t}, 15, v{V_L}")
    a(f"v_mov_b32 v{t+7}, {OOB}")
    for n, (Tv, Tk) in enumerate(pairs):
        a(f"v_add_u32 v{t+1}, {16*Tk}, v{t}")
        a(f"v_mul_u32_u24 v{t+2}, 96, v{t+1}")
        if Tv is not None:
            a(f"v_cmp_lt_u32 vcc, 19, v{t+1}")
            a(f"v_cndmask_b32 v{t+3}, 0, 5, vcc")
            a(f"v_add_u32 v{t+4}, {(4*Tv-10) & 0xffffffff}, v{t+8}")
            a(f"v_sub_u32 v{t+4}, v{t+4}, v{t+3}")
            a(f"v_lshl_add_u32 v{t+2}, v{t+4}, 4, v{t+2}")
            a(f"v_cmp_gt_u32 vcc, 5, v{t+4}")
        else:
            a(f"v_add_u32 v{t+2}, 80, v{t+2}")
            a(f"v_cmp_eq_u32 vcc, 0, v{t+8}")
        a(f"v_cndmask_b32 v{t+2}, v{t+7}, v{t+2}, vcc")
        a(f"v_cmp_gt_u32 vcc, 40, v{t+1}")
        a(f"v_cndmask_b32 v{V_EA+n}, v{t+7}, v{t+2}, vcc")
    zero_acc(a, 160)
    first_reads(a, TK)
    stamp(a, 2)
    mainloop(a, TK)
    stamp(a, 3)
    a(f"s_mov_b32 s70, {LOG2E}")
    a(f"s_mov_b32 s71, {LOG2E}")
    a(f"s_mov_b32 s72, {ONE_EPS}")
    a(f"s_mov_b32 s73, {ONE_EPS}")
    a(f"s_mov_b32 s74, {EPS}")
    a(f"s_mov_b32 s75, {EPS}")
    a("s_lshl_b32 s53, s6, 1")
    a("s_add_u32 s53, s53, s56")
    a("s_lshl_b32 s53, s53, 5")
    a("s_lshl_b32 s54, s7, 2")
    a("s_add_u32 s53, s53, s54")
    a("s_lshl_b32 s54, s57, 1")
    a("s_add_u32 s53, s53, s54")
    a("s_mul_i32 s53, s53, 1920")
    a(f"s_add_u32 s53, s53, {KVP}")
    a(f"v_and_b32 v{t}, 15, v{V_L}")
    a(f"v_cmp_gt_u32 s[76:77], 8, v{t}")
    a(f"v_cmp_eq_u32 vcc, 0, v{t}")
    a(f"v_mov_b32 v{t+1}, 0x3f803f80")
    for d in range(4):
        a(f"v_cndmask_b32 v{t+32+d}, 0, v{t+1}, vcc")
    ONES = t + 32
    KD = 120
    FR = t + 36
    for u in range(4):
        for half in range(2):
            tt = 2*u + half
            R0 = (tt*5)*4
            phi8(a, list(range(R0, R0+8)), t)
            R2 = (tt*5+2)*4
            for i in range(0, 4, 2):
                a(f"v_pk_mul_f32 {vr(t+8+i,2)}, {vr(R2+i,2)}, s[70:71]")
            for i in range(4):
                a(f"v_exp_f32 v{t+8+i}, v{t+8+i} clamp")
            for i in range(0, 4, 2):
                a(f"v_pk_add_f32 {vr(t+12+i,2)}, {vr(R2+i,2)}, s[72:73]")
            for i in range(0, 4, 2):
                a(f"v_pk_add_f32 {vr(t+8+i,2)}, {vr(t+8+i,2)}, s[74:75]")
            for i in range(4):
                a(f"v_max_f32 v{t+8+i}, v{t+8+i}, v{t+12+i}")
            for i in range(4):
                a(f"v_cndmask_b32 v{R2+i}, v{R2+i}, v{t+8+i}, s[76:77]")
            for f in range(5):
                R = (tt*5+f)*4
                for d in range(2):
                    a(f"v_cvt_pk_bf16_f32 v{FR+4*f+2*half+d}, v{R+2*d}, v{R+2*d+1}")
        for n, (Tv, Tk) in enumerate(pairs):
            A = vr(FR+4*Tv) if Tv is not None else vr(ONES)
            C = ar(KD+4*n) if u else "0"
            a(f"v_mfma_f32_16x16x32_bf16 {ar(KD+4*n)}, {A}, {vr(FR+4*Tk)}, {C}")
    for n in range(10):
        a(f"buffer_store_dwordx4 {ar(KD+4*n)}, v{V_EA+n}, s[20:23], s53 offen")
    stamp(a, 4)
    stamp(a, 5)
    stamp_flush(a, 6, STAMP)
    a.label("L_k1_end")
    a("s_endpgm")
    return a

def gen_k2():
    a = Asm()
    ACC = 0; PQ = 80
    VL = 160; VL16 = 161; VG = 164; VDEN = 168; VR = 184; T = 200
    VWA = 192
    D = 3
    def abuf(slot): return slot * 36
    AMZ = 108
    stamp(a, 0)
    a("s_load_dwordx2 s[24:25], s[0:1], 64")
    a("s_load_dwordx2 s[40:41], s[0:1], 80")
    a("s_cmp_ge_u32 s2, 256")
    a("s_cbranch_scc1 L_k2_end")
    a(f"v_and_b32 v{VL}, 63, v0")
    a(f"v_lshrrev_b32 v{T}, 6, v0")
    a(f"v_lshlrev_b32 v{VL16}, 4, v{VL}")
    a(f"v_readfirstlane_b32 s42, v{T}")
    a("s_bfe_u32 s3, s2, 0x20001")
    a("s_lshr_b32 s5, s2, 5")
    a("s_lshl_b32 s3, s3, 3")
    a("s_add_u32 s6, s3, s5")
    a("s_and_b32 s3, s2, 1")
    a("s_lshl_b32 s3, s3, 2")
    a("s_bfe_u32 s5, s2, 0x20003")
    a("s_add_u32 s7, s3, s5")
    a("s_lshl_b32 s3, s6, 2")
    a("s_mul_i32 s4, s42, 12")
    for tau in range(4):
        a(f"s_xor_b32 s5, s42, {tau}")
        a("s_add_u32 s5, s5, s3")
        a("s_mul_i32 s5, s5, 68")
        a("s_add_u32 s5, s5, s4")
        a(f"s_lshl_b32 s{44+tau}, s5, 10")
    a("s_mul_i32 s5, s7, 48")
    a("s_add_u32 s5, s5, s4")
    a("s_mul_i32 s5, s5, 5120")
    a(f"s_add_u32 s48, s5, {WDF}")
    a("s_add_u32 s49, s48, 4096")
    a("s_waitcnt lgkmcnt(0)")
    srd(a, 20, 40, 41, WSSZ)
    srd(a, 8, 24, 25, 2048*1280)
    def loads_b(slot):
        b = abuf(slot)
        r = []
        for tau in range(4):
            r.append(f"buffer_load_dwordx4 {ar(b+4*tau)}, v{VL16}, s[20:23], s{44+tau} offen")
        for t in range(5):
            if t < 4:
                r.append(f"buffer_load_dwordx4 {ar(b+16+4*t)}, v{VL16}, s[20:23], s48 offen offset:{t*1024}")
            else:
                r.append(f"buffer_load_dwordx4 {ar(b+16+4*t)}, v{VL16}, s[20:23], s49 offen")
        adv = [f"s_addk_i32 s{44+tau}, 0x400" for tau in range(4)] + ["s_addk_i32 s48, 5120", "s_addk_i32 s49, 5120"]
        return r, adv
    a("s_cmp_ge_u32 s42, 2")
    a("s_cbranch_scc1 L_k2_nom1")
    a(f"v_and_b32 v{T}, 15, v{VL}")
    a(f"v_lshrrev_b32 v{T+1}, 4, v{VL}")
    a("s_lshl_b32 s3, s42, 4")
    a(f"v_add_u32 v{T+2}, s3, v{T}")
    a(f"v_mul_u32_u24 v{T+3}, 96, v{T+2}")
    a(f"v_lshl_add_u32 v{T+3}, v{T+1}, 5, v{T+3}")
    a(f"v_mov_b32 v{T+7}, {OOB}")
    a(f"v_cmp_gt_u32 vcc, 20, v{T+2}")
    a(f"v_cndmask_b32 v{T+3}, v{T+7}, v{T+3}, vcc")
    a(f"v_cmp_gt_u32 vcc, 3, v{T+1}")
    a(f"v_cndmask_b32 v{T+3}, v{T+7}, v{T+3}, vcc")
    a("s_mul_i32 s3, s6, 1920")
    a(f"s_add_u32 s3, s3, {KVP}")
    for p in range(NPART):
        a(f"buffer_load_dwordx4 {vr(8*p)}, v{T+3}, s[20:23], s3 offen")
        a(f"buffer_load_dwordx4 {vr(8*p+4)}, v{T+3}, s[20:23], s3 offen offset:16")
        a(f"s_add_u32 s3, s3, {32*1920}")
    a("s_lshl_b32 s3, s6, 3")
    a("s_add_u32 s3, s3, s7")
    a("s_mul_i32 s3, s3, 5120")
    a(f"s_add_u32 s3, s3, {WOF}")
    a("s_add_u32 s4, s3, 4096")
    for t in range(5):
        if t < 4: a(f"buffer_load_dwordx4 {vr(128+4*t)}, v{VL16}, s[20:23], s3 offen offset:{t*1024}")
        else: a(f"buffer_load_dwordx4 {vr(128+4*t)}, v{VL16}, s[20:23], s4 offen")
    a.label("L_k2_nom1")
    for sl in range(D):
        r, adv = loads_b(sl)
        for x in r + adv: a(x)
    a(f"v_and_b32 v{T+8}, 15, v{VL}")
    a(f"v_lshlrev_b32 v{T+8}, 2, v{T+8}")
    a("s_lshl_b32 s3, s6, 2")
    for tau in range(4):
        a(f"s_xor_b32 s5, s42, {tau}")
        a("s_add_u32 s5, s5, s3")
        a("s_lshl_b32 s5, s5, 6")
        a(f"s_add_u32 s5, s5, {GOFF}")
        a(f"buffer_load_dword v{VG+tau}, v{T+8}, s[20:23], s5 offen")
    stamp(a, 1)
    a("s_cmp_ge_u32 s42, 2")
    a("s_cbranch_scc1 L_k2_nom2")
    a("s_lshr_b32 s50, s6, 3")
    a("s_bfe_u32 s51, s6, 0x20001")
    a("s_and_b32 s52, s6, 1")
    a("s_lshl_b32 s3, s51, 2")
    a("s_add_u32 s3, s3, s52")
    a("s_add_u32 s3, s3, 32")
    a(f"v_cmp_eq_u32 vcc, s3, v{VL}")
    a(f"v_mov_b32 v{T+4}, 0x3f80")
    a("v_mov_b32 v148, 0")
    a("v_mov_b32 v149, 0")
    a(f"v_cndmask_b32 v150, 0, v{T+4}, vcc")
    a("v_mov_b32 v151, 0")
    a("s_lshl_b32 s3, s42, 2")
    a(f"v_add_u32 v{T+4}, s3, v{T+1}")
    a("s_mul_i32 s4, s52, 5")
    a(f"v_add_u32 v{T+5}, s4, v{T+4}")
    a(f"v_lshrrev_b32 v{T+6}, 1, v{T+5}")
    a(f"v_mul_u32_u24 v{T+6}, 6144, v{T+6}")
    a(f"v_xor_b32 v{T+5}, s51, v{T+5}")
    a(f"v_and_b32 v{T+5}, 1, v{T+5}")
    a(f"v_lshl_add_u32 v{T+6}, v{T+5}, 3, v{T+6}")
    a(f"v_lshl_add_u32 v{T+6}, v{T}, 4, v{T+6}")
    a(f"v_cmp_gt_u32 vcc, 5, v{T+4}")
    a(f"v_cndmask_b32 v{T+6}, v{T+7}, v{T+6}, vcc")
    a("s_mul_i32 s3, s7, 20")
    a("s_mul_i32 s4, s50, 5")
    a("s_add_u32 s3, s3, s4")
    a("s_mul_i32 s3, s3, 6144")
    a("s_lshl_b32 s4, s51, 8")
    a("s_add_u32 s3, s3, s4")
    a(f"s_add_u32 s3, s3, {MZ}")
    a("s_add_u32 s4, s3, 4096")
    a(f"s_waitcnt vmcnt({5 + 9*D + 4})")
    n = NPART
    while n > 1:
        n //= 2
        for p in range(n):
            for i in range(0, 8, 2):
                a(f"v_pk_add_f32 {vr(8*p+i,2)}, {vr(8*p+i,2)}, {vr(8*(p+n)+i,2)}")
    for d in range(4):
        a(f"v_cvt_pk_bf16_f32 v{8+d}, v{2*d}, v{2*d+1}")
    a(f"s_waitcnt vmcnt({9*D + 4})")
    for t in range(6):
        a(f"v_mfma_f32_16x16x32_bf16 {vr(16+4*t)}, {vr(8)}, {vr(128+4*t)}, 0")
    for t in range(6):
        a(f"v_cvt_pk_bf16_f32 v{48+2*t}, v{16+4*t}, v{17+4*t}")
        a(f"v_cvt_pk_bf16_f32 v{49+2*t}, v{18+4*t}, v{19+4*t}")
        if t < 4: a(f"buffer_store_dwordx2 {vr(48+2*t,2)}, v{T+6}, s[20:23], s3 offen offset:{t*1024} sc0 sc1")
        else: a(f"buffer_store_dwordx2 {vr(48+2*t,2)}, v{T+6}, s[20:23], s4 offen offset:{(t-4)*1024} sc0 sc1")
    a("s_waitcnt vmcnt(0)")
    a("s_lshl_b32 s3, s7, 8")
    a(f"s_add_u32 s3, s3, {CNT}")
    a(f"v_mov_b32 v{T+4}, 1")
    a("s_mov_b64 exec, 1")
    a(f"buffer_atomic_add v{T+4}, off, s[20:23], s3 sc1")
    a("s_mov_b64 exec, -1")
    a("s_waitcnt vmcnt(0)")
    a.label("L_k2_nom2")
    for i in range(80): a(f"v_mov_b32 v{ACC+i}, 0")
    stamp(a, 2)
    def mf_b(slot):
        b = abuf(slot)
        return [f"v_mfma_f32_16x16x32_bf16 {vr(ACC+(tau*5+t)*4)}, {ar(b+16+4*t)}, {ar(b+4*tau)}, {vr(ACC+(tau*5+t)*4)}"
                for tau in range(4) for t in range(5)]
    a("s_mov_b32 s43, 0")
    a.label("L_k2_b")
    for sl in range(D):
        a(f"s_waitcnt vmcnt({9*(D-1)})")
        m = mf_b(sl)
        for x in m: a(x)
        r, adv = loads_b(sl)
        for x in r + adv: a(x)
    a("s_add_u32 s43, s43, 1")
    a("s_cmp_lt_u32 s43, 3")
    a("s_cbranch_scc1 L_k2_b")
    a("s_mul_i32 s3, s42, -7168")
    a(f"s_add_u32 s3, s3, {36*1024}")
    for tau in range(4):
        a(f"s_add_u32 s{44+tau}, s{44+tau}, s3")
        a(f"s_add_u32 s{52+tau}, s{44+tau}, 4096")
    a("s_lshl_b32 s3, s7, 8")
    a(f"s_add_u32 s56, s3, {CNT}")
    a("s_mul_i32 s3, s7, 20")
    a("s_mul_i32 s4, s42, 5")
    a("s_add_u32 s3, s3, s4")
    a("s_mul_i32 s3, s3, 6144")
    a(f"s_add_u32 s48, s3, {MZ}")
    a("s_add_u32 s49, s48, 4096")
    a(f"s_waitcnt vmcnt({9*(D-1)})")
    for x in mf_b(0): a(x)
    a(f"buffer_load_dword v{T}, off, s[20:23], s56 sc0 sc1")
    for tau in range(4):
        for i in range(5):
            if i < 4: a(f"buffer_load_dwordx4 {vr(PQ+(tau*5+i)*4)}, v{VL16}, s[20:23], s{44+tau} offen offset:{i*1024}")
            else: a(f"buffer_load_dwordx4 {vr(PQ+(tau*5+i)*4)}, v{VL16}, s[20:23], s{52+tau} offen")
    a(f"s_waitcnt vmcnt({9+21})")
    for x in mf_b(1): a(x)
    a(f"s_waitcnt vmcnt(20)")
    stamp(a, 3)
    a("s_mov_b32 s57, 0")
    a.label("L_k2_poll")
    a(f"v_readfirstlane_b32 s3, v{T}")
    a("s_cmp_ge_u32 s3, 64")
    a("s_cbranch_scc1 L_k2_ready")
    a("s_add_u32 s57, s57, 1")
    a("s_cmp_gt_u32 s57, 0x40000")
    a("s_cbranch_scc1 L_k2_ready")
    a("s_sleep 2")
    a(f"buffer_load_dword v{T}, off, s[20:23], s56 sc0 sc1")
    a("s_waitcnt vmcnt(0)")
    a("s_branch L_k2_poll")
    a.label("L_k2_ready")
    stamp(a, 4)
    for i in range(5):
        a(f"buffer_load_dwordx4 {ar(AMZ+(i*6+5)*4)}, v{VL16}, s[20:23], s49 offen offset:1024 sc0 sc1")
        a("s_addk_i32 s49, 6144")
    a(f"s_sub_u32 s49, s49, {5*6144}")
    for i in range(5):
        for t in range(5):
            if t < 4: a(f"buffer_load_dwordx4 {ar(AMZ+(i*6+t)*4)}, v{VL16}, s[20:23], s48 offen offset:{t*1024} sc0 sc1")
            else: a(f"buffer_load_dwordx4 {ar(AMZ+(i*6+t)*4)}, v{VL16}, s[20:23], s49 offen sc0 sc1")
        a("s_addk_i32 s48, 6144")
        a("s_addk_i32 s49, 6144")
    for x in mf_b(2): a(x)
    for tau in range(4):
        a(f"v_sub_f32 v{T+2+tau}, 1.0, v{VG+tau}")
    a("s_nop 4")
    for tau in range(4):
        for i in range(20):
            a(f"v_mul_f32 v{ACC+tau*20+i}, v{ACC+tau*20+i}, v{T+2+tau}")
    a("s_waitcnt vmcnt(25)")
    for i in range(5):
        for tau in range(4):
            C = vr(VDEN+4*tau) if i else "0"
            a(f"v_mfma_f32_16x16x32_bf16 {vr(VDEN+4*tau)}, {ar(AMZ+(i*6+5)*4)}, {vr(PQ+(tau*5+i)*4)}, {C}")
    a(f"v_bfe_u32 v{T+8}, v{VL}, 4, 1")
    a(f"v_cmp_eq_u32 s[76:77], 1, v{T+8}")
    a(f"s_mov_b32 s78, 0xffff0000")
    for tau in range(4):
        for e in range(2):
            a(f"v_add_f32 v{VDEN+4*tau+e}, {EPS}, v{VDEN+4*tau+e}")
    for tau in range(4):
        for e in range(2):
            a(f"v_rcp_f32 v{VDEN+4*tau+e}, v{VDEN+4*tau+e}")
    for tau in range(4):
        for e in range(2):
            a(f"v_mul_f32 v{VDEN+4*tau+e}, v{VDEN+4*tau+e}, v{VG+tau}")
    for tau in range(4):
        a(f"v_cndmask_b32 v{VDEN+4*tau+2}, v{VDEN+4*tau}, v{VDEN+4*tau+1}, s[76:77]")
        a(f"v_cndmask_b32 v{VDEN+4*tau+3}, v{VDEN+4*tau+1}, v{VDEN+4*tau}, s[76:77]")
    for i in range(5):
        for tau in range(4):
            F = PQ + (tau*5+i)*4
            tm = T + 8*(tau % 2) + 16
            for d in range(4):
                a(f"v_lshlrev_b32 v{tm+2*d}, 16, v{F+d}")
                a(f"v_and_b32 v{tm+2*d+1}, s78, v{F+d}")
            for d in range(4):
                if i < 2: rr = VDEN+4*tau
                elif i > 2: rr = VDEN+4*tau+1
                else: rr = VDEN+4*tau+2+(d//2)
                a(f"v_mul_f32 v{tm+2*d}, v{tm+2*d}, v{rr}")
                a(f"v_mul_f32 v{tm+2*d+1}, v{tm+2*d+1}, v{rr}")
            for d in range(4):
                a(f"v_cvt_pk_bf16_f32 v{F+d}, v{tm+2*d}, v{tm+2*d+1}")
        a(f"s_waitcnt vmcnt({20-5*i})")
        for tau in range(4):
            for t in range(5):
                A = ACC+(tau*5+t)*4
                a(f"v_mfma_f32_16x16x32_bf16 {vr(A)}, {ar(AMZ+(i*6+t)*4)}, {vr(PQ+(tau*5+i)*4)}, {vr(A)}")
    stamp(a, 5)
    for tau in range(1, 4):
        a(f"s_xor_b32 s3, s42, {tau}")
        a("s_mul_i32 s3, s3, 15360")
        a(f"s_add_u32 s3, s3, {(tau-1)*5120}")
        a(f"v_add_u32 v{VWA+tau}, s3, v{VL16}")
    a("s_mul_i32 s3, s42, 15360")
    a(f"v_add_u32 v{VWA}, s3, v{VL16}")
    for tau in range(1, 4):
        for t in range(5):
            a(f"ds_write_b128 v{VWA+tau}, {vr(ACC+(tau*5+t)*4)} offset:{t*1024}")
    a("s_waitcnt lgkmcnt(0)")
    a("s_barrier")
    for j in range(15):
        a(f"ds_read_b128 {vr(PQ+4*j)}, v{VWA} offset:{j*1024}")
    a("s_lshl_b32 s3, s6, 6")
    a("s_lshl_b32 s4, s42, 4")
    a("s_add_u32 s3, s3, s4")
    a("s_mul_i32 s3, s3, 1280")
    a("s_mul_i32 s4, s7, 160")
    a("s_add_u32 s3, s3, s4")
    a(f"v_and_b32 v{T}, 15, v{VL}")
    a(f"v_mul_u32_u24 v{T}, 1280, v{T}")
    a(f"v_lshrrev_b32 v{T+1}, 4, v{VL}")
    a(f"v_lshl_add_u32 v{T+2}, v{T+1}, 4, v{T}")
    a(f"v_lshl_add_u32 v{T+3}, v{T+1}, 3, v{T}")
    for src in range(3):
        a(f"s_waitcnt lgkmcnt({10-5*src})")
        for i in range(0, 20, 2):
            a(f"v_pk_add_f32 {vr(ACC+i,2)}, {vr(ACC+i,2)}, {vr(PQ+20*src+i,2)}")
    for i in range(10):
        a(f"v_cvt_pk_bf16_f32 v{T+8+i}, v{ACC+2*i}, v{ACC+2*i+1}")
    a(f"buffer_store_dwordx4 {vr(T+8)}, v{T+2}, s[8:11], s3 offen")
    a(f"buffer_store_dwordx4 {vr(T+12)}, v{T+2}, s[8:11], s3 offen offset:64")
    a(f"buffer_store_dwordx2 {vr(T+16,2)}, v{T+3}, s[8:11], s3 offen offset:128")
    stamp(a, 6)
    stamp_flush(a, 7, STAMP + 0x10000)
    a.label("L_k2_end")
    a("s_endpgm")
    return a

HDR = open('gated_mix__linear_attn_block__glu_gated_glu__prompt.s.ref').read().split('; Override launch')[0]

def finish(a):
    lines, n = hazard.pad(a.lines)
    bad = hazard.check_branches(lines)
    for b in bad: print("BRANCH HAZARD:", b, file=sys.stderr)
    print("hazard nops inserted:", n, file=sys.stderr)
    return "\n".join(lines) + "\n"

out = HDR
out += f"; @launch kernel=k1_kernel grid=(256,1,1) block=(256,1,1) lds={LDS1}\n"
out += f"; @launch kernel=k2_kernel grid=(256,1,1) block=(256,1,1) lds=61440\n"
out += '.amdgcn_target "amdgcn-amd-amdhsa--gfx950"\n'
out += kernel_begin("k1_kernel") + finish(gen_k1())
out += kernel_begin("k2_kernel") + finish(gen_k2())
out += kernel_desc("k1_kernel", 416, 256)
out += kernel_desc("k2_kernel", 488, 256)
open(sys.argv[1], "w").write(out)
```

```python
import sys
from asmlib import *
import hazard

AF   = 0
AFSZ = 128 * 68 * 1024
WDF  = 0x880000
MZ   = 0xA60000
WOF  = 0xB50000
KVP  = 0xC90000
GOFF = 0xD80000
CNT  = 0xD82000
WSSZ = 0xD84000
STAMP = 0xE00000
NPART = 16

STG = 53248
GWL = 3 * STG
LDS1 = 163840
OOB = 0x7FFF0000

LOG2E = 0x3FB8AA3B
NLOG2E = 0xBFB8AA3B
EPS = 0x358637BD
ONE_EPS = 0x3F800008

OPT = dict(stamp=0, nomfma=0, nodma=0)
for x in sys.argv[2:]:
    k, v = x.split('=')
    OPT[k] = int(v)

def vr(b, n=4): return f"v[{b}:{b+n-1}]"
def ar(b, n=4): return f"a[{b}:{b+n-1}]"

def srd(a, d, lo, hi, nrec):
    a(f"s_mov_b32 s{d}, s{lo}")
    a(f"s_mov_b32 s{d+1}, s{hi}")
    a(f"s_mov_b32 s{d+2}, {nrec}")
    a(f"s_mov_b32 s{d+3}, 0x00020000")

def stamp(a, idx):
    if OPT['stamp'] == 1:
        a(f"s_memrealtime s[{60+2*idx}:{61+2*idx}]")
    elif OPT['stamp'] == 2:
        a(f"s_memtime s[{60+2*idx}:{61+2*idx}]")

def stamp_flush(a, n, base, wgreg="s2", wavereg="s42"):
    if not OPT['stamp']: return
    a("s_waitcnt lgkmcnt(0) vmcnt(0)")
    a(f"s_lshl_b32 s58, {wgreg}, 2")
    a(f"s_add_u32 s58, s58, {wavereg}")
    a(f"s_lshl_b32 s58, s58, 6")
    a(f"s_add_u32 s58, s58, {base}")
    a(f"s_mov_b32 s22, 0x10000000")
    a("v_mov_b32 v250, 0")
    for i in range(n):
        a(f"v_mov_b32 v251, s{60+2*i}")
        a(f"buffer_store_dword v251, v250, s[20:23], s58 offen offset:{4*i}")
    a("s_waitcnt vmcnt(0)")

V_GL = 160
V_L = 164
V_DMA = 165
V_TB = 178
V_FB = 180
V_GW = 184
V_EA = 185
V_T = 200
A_SET = [0, 56]
A_GW = [112, 116]

def interleave(a, mfmas, fillers):
    for i, m in enumerate(mfmas):
        if not OPT['nomfma']:
            a(m)
        for f in fillers.get(i, []):
            a(f)
    for p in sorted(k for k in fillers if k >= len(mfmas)):
        for f in fillers[p]: a(f)

def mainloop(a, T):
    NT, NF = T['NT'], T['NF']
    name = T['name']
    def reads(ks, st):
        base = A_SET[st]
        r = []
        tok = [f"ds_read_b128 {ar(base+4*t)}, v{V_TB+ks} offset:{t*2048}" for t in range(NT)]
        fea = []
        for f in range(NF):
            vb, imm = T['fread'](f)
            for hh in range(2):
                fea.append(f"ds_read_b64_tr_b16 {ar(base+4*NT+4*f+2*hh, 2)}, v{vb} offset:{imm + ks*T['ksb'] + hh*T['hhb']}")
        r = tok[:1] + fea[:4] + tok[1:2] + fea[4:8] + tok[2:] + fea[8:]
        if T.get('gate'):
            r.append(f"ds_read_b128 {ar(A_GW[st])}, v{V_GW} offset:{ks*64}")
        return r
    def mfmas(st):
        base = A_SET[st]
        m = []
        for (acc, t, f) in T['order']:
            x = ar(base + 4*t); wf = ar(base + 4*NT + 4*f)
            if T['tokrows']:
                m.append(f"v_mfma_f32_16x16x32_bf16 {vr(acc)}, {x}, {wf}, {vr(acc)}")
            else:
                m.append(f"v_mfma_f32_16x16x32_bf16 {vr(acc)}, {wf}, {x}, {vr(acc)}")
        if T.get('gate'):
            m.append(f"v_mfma_f32_16x16x32_bf16 {vr(V_GL)}, {ar(A_GW[st])}, {ar(base)}, {vr(V_GL)}")
        return m
    addr_regs = [V_TB, V_TB+1] + [V_FB+i for i in range(T['nfb'])]
    seq = T['dma']() if not OPT['nodma'] else []
    H1 = 7
    def top(variant):
        a("s_barrier")
        for r in addr_regs:
            a(f"v_add_u32 v{r}, s47, v{r}")
        if T.get('gate'):
            a(f"v_add_u32 v{V_GW}, 128, v{V_GW}")
    a.label(f"L_{name}_A")
    a("s_waitcnt vmcnt(13) lgkmcnt(0)" if seq else "s_waitcnt lgkmcnt(0)")
    top('A')
    fl = {}
    for i, r in enumerate(reads(0, 0)):
        fl.setdefault(i, []).append(r)
    for j, (m0, ld) in enumerate(seq[:H1]):
        fl.setdefault(6*j+1, []).append(m0)
        fl.setdefault(6*j+2, []).append(ld)
    interleave(a, mfmas(1), fl)
    a.label(f"L_{name}_mid")
    a("s_waitcnt lgkmcnt(0)")
    fl = {}
    for i, r in enumerate(reads(1, 1)):
        fl.setdefault(i, []).append(r)
    for j, (m0, ld) in enumerate(seq[H1:]):
        fl.setdefault(6*j+2, []).append(m0)
        fl.setdefault(6*j+3, []).append(ld)
    fl.setdefault(34, []).extend(["s_add_u32 s44, s44, 128", f"s_add_u32 s45, s45, {T['wstep']}"])
    fl.setdefault(35, []).extend(["s_add_u32 s46, s46, s47", "s_add_u32 s43, s43, 1"])
    fl.setdefault(36, []).extend([f"s_cmp_eq_u32 s46, {2*STG}", f"s_cselect_b32 s47, {-2*STG & 0xffffffff}, s59"])
    fl.setdefault(37, []).extend([f"s_cmp_lt_u32 s43, 7"])
    interleave(a, mfmas(0), fl)
    a(f"s_cbranch_scc1 L_{name}_A")
    a("s_waitcnt vmcnt(13) lgkmcnt(0)")
    a(f"s_branch L_{name}_B2")
    a.label(f"L_{name}_B")
    a(f"s_waitcnt vmcnt({T['nside']}) lgkmcnt(0)")
    a.label(f"L_{name}_B2")
    top('B')
    if T['nside']:
        Ls = a.newlabel()
        a("s_cmp_eq_u32 s43, 7")
        a(f"s_cbranch_scc0 {Ls}")
        side_dma(a)
        a.label(Ls)
    fl = {}
    for i, r in enumerate(reads(0, 0)):
        fl.setdefault(i, []).append(r)
    fl.setdefault(37, []).extend([f"s_cmp_eq_u32 s43, 9"])
    interleave(a, mfmas(1), fl)
    a(f"s_cbranch_scc1 L_{name}_done")
    a("s_waitcnt lgkmcnt(0)")
    fl = {}
    for i, r in enumerate(reads(1, 1)):
        fl.setdefault(i, []).append(r)
    fl.setdefault(35, []).extend(["s_add_u32 s46, s46, s47", "s_add_u32 s43, s43, 1"])
    fl.setdefault(36, []).extend([f"s_cmp_eq_u32 s46, {2*STG}", f"s_cselect_b32 s47, {-2*STG & 0xffffffff}, s59"])
    interleave(a, mfmas(0), fl)
    a(f"s_branch L_{name}_B")
    a.label(f"L_{name}_done")

def issue_stage(a, T, st, lo=0, hi=13, adv=True):
    a(f"s_mov_b32 s46, {st*STG}")
    if not OPT['nodma']:
        for (m0, ld) in T['dma']()[lo:hi]:
            a(m0); a("s_nop 0"); a(ld)
    if adv:
        a("s_add_u32 s44, s44, 128")
        a(f"s_add_u32 s45, s45, {T['wstep']}")

def first_reads(a, T):
    if not OPT['nodma']:
        a("s_waitcnt vmcnt(13)")
    a("s_barrier")
    stamp(a, 2)
    NT, NF = T['NT'], T['NF']
    base = A_SET[0]
    for t in range(NT):
        a(f"ds_read_b128 {ar(base+4*t)}, v{V_TB} offset:{t*2048}")
    for f in range(NF):
        vb, imm = T['fread'](f)
        for hh in range(2):
            a(f"ds_read_b64_tr_b16 {ar(base+4*NT+4*f+2*hh, 2)}, v{vb} offset:{imm + hh*T['hhb']}")
    if T.get('gate'):
        a(f"ds_read_b128 {ar(A_GW[0])}, v{V_GW}")
    issue_stage(a, T, 2, 0, 7, adv=False)
    a("s_mov_b32 s43, -1")
    a(f"s_mov_b32 s59, {STG}")
    a(f"s_mov_b32 s47, {-2*STG & 0xffffffff}")
    a(f"s_branch L_{T['name']}_mid")

def zero_acc(a, n):
    for i in range(0, n, 2):
        a(f"v_mov_b64 v[{i}:{i+1}], 0")

def x_voffsets(a, nblk, srow0, xorreg=None):
    t = V_T
    a(f"s_mul_i32 s53, s42, {nblk*8}")
    a(f"v_lshrrev_b32 v{t}, 3, v{V_L}")
    a(f"v_add_u32 v{t}, s53, v{t}")
    a(f"v_and_b32 v{t+1}, 7, v{V_L}")
    a(f"s_movk_i32 s54, 1280")
    for j in range(nblk):
        a(f"v_add_u32 v{t+2}, {8*j}, v{t}")
        a(f"v_bfe_u32 v{t+3}, v{t+2}, 1, 3")
        a(f"v_xor_b32 v{t+3}, v{t+3}, v{t+1}")
        if xorreg is not None:
            a(f"v_xor_b32 v{t+2}, {xorreg}, v{t+2}")
        a(f"v_add_u32 v{t+2}, {srow0}, v{t+2}")
        a(f"v_mul_lo_u32 v{t+2}, v{t+2}, s54")
        a(f"v_lshl_add_u32 v{V_DMA+j}, v{t+3}, 4, v{t+2}")

def tok_bases(a, stokoff):
    t = V_T
    a(f"v_and_b32 v{t}, 15, v{V_L}")
    a(f"v_lshrrev_b32 v{t+1}, 4, v{V_L}")
    a(f"v_lshrrev_b32 v{t+2}, 1, v{t}")
    a(f"v_xor_b32 v{t+2}, v{t+2}, v{t+1}")
    a(f"v_lshlrev_b32 v{t+3}, 7, v{t}")
    a(f"v_add_u32 v{t+3}, {stokoff}, v{t+3}")
    a(f"v_lshl_add_u32 v{V_TB}, v{t+2}, 4, v{t+3}")
    a(f"v_xor_b32 v{V_TB+1}, 64, v{V_TB}")

def lane_grc(a):
    t = V_T
    a(f"v_lshrrev_b32 v{t+8}, 4, v{V_L}")
    a(f"v_bfe_u32 v{t+9}, v{V_L}, 2, 2")
    a(f"v_and_b32 v{t+10}, 3, v{V_L}")
    a(f"v_lshl_add_u32 v{t+11}, v{t+8}, 3, v{t+9}")

def div20(a, dst, src, tmp_s="s54"):
    a(f"v_mul_u32_u24 v{dst}, 3277, v{src}")
    a(f"v_lshrrev_b32 v{dst}, 16, v{dst}")

SIDE_LDS = STG
def side_setup(a):
    t = V_T
    a(f"s_mov_b32 s86, {640*1280}")
    a("s_cmp_lt_u32 s48, 96")
    a("s_cselect_b32 s84, s36, s28")
    a("s_cselect_b32 s85, s37, s29")
    a(f"s_cselect_b32 s86, {1536*1280}, s86")
    a("s_mov_b32 s87, 0x00020000")
    a("s_cselect_b32 s91, 0, 96")
    a("s_cselect_b32 s92, 32, 20")
    a("s_cselect_b64 s[94:95], -1, 0")
    a("s_sub_u32 s91, s48, s91")
    a("s_and_b32 s93, s91, 1")
    a("s_lshr_b32 s91, s91, 1")
    a("s_mul_i32 s88, s91, s92")
    a("s_mul_i32 s88, s88, 1280")
    a("s_mul_i32 s96, s93, 640")
    a("s_add_u32 s88, s88, s96")
    a("s_lshl_b32 s96, s93, 2")
    a("s_add_u32 s96, s96, s42")
    a("s_mul_i32 s97, s96, 48")
    a("s_add_u32 s97, s97, s91")
    a("s_mul_i32 s97, s97, 5120")
    a(f"s_add_u32 s97, s97, {WDF}")
    a("s_lshl_b32 s98, s91, 3")
    a("s_add_u32 s98, s98, s96")
    a("s_mul_i32 s98, s98, 5120")
    a(f"s_add_u32 s98, s98, {WOF}")
    a("s_cmp_lt_u32 s48, 96")
    a("s_cselect_b32 s89, s97, s98")
    a("s_add_u32 s90, s89, 4096")
    a("s_mul_i32 s53, s42, 320")
    a("s_movk_i32 s54, 1280")
    a(f"v_mov_b32 v{t+7}, {OOB}")
    for j in range(5):
        a(f"v_add_u32 v{t}, s53, v{V_L}")
        if j: a(f"v_add_u32 v{t}, {64*j}, v{t}")
        a(f"v_mul_u32_u24 v{t+1}, 1639, v{t}")
        a(f"v_lshrrev_b32 v{t+1}, 16, v{t+1}")
        a(f"v_mul_u32_u24 v{t+2}, 40, v{t+1}")
        a(f"v_sub_u32 v{t+2}, v{t}, v{t+2}")
        a(f"v_bfe_u32 v{t+3}, v{t+1}, 2, 1")
        a(f"v_lshlrev_b32 v{t+3}, 4, v{t+3}")
        a(f"v_lshrrev_b32 v{t+4}, 3, v{t+1}")
        a(f"v_lshl_add_u32 v{t+3}, v{t+4}, 2, v{t+3}")
        a(f"v_and_b32 v{t+4}, 3, v{t+1}")
        a(f"v_add_u32 v{t+3}, v{t+3}, v{t+4}")
        a(f"v_cndmask_b32 v{t+3}, v{t+1}, v{t+3}, s[94:95]")
        a(f"v_cmp_gt_u32 vcc, s92, v{t+3}")
        a(f"v_mul_lo_u32 v{t+3}, v{t+3}, s54")
        a(f"v_lshl_add_u32 v{t+3}, v{t+2}, 4, v{t+3}")
        a(f"v_cndmask_b32 v{V_EA+j}, v{t+7}, v{t+3}, vcc")
    lane_grc(a)
    a("s_mul_i32 s53, s42, 160")
    a(f"s_add_u32 s53, s53, {SIDE_LDS}")
    a(f"v_mul_u32_u24 v{t}, 640, v{t+11}")
    a(f"v_add_u32 v{t}, s53, v{t}")
    a(f"v_lshl_add_u32 v{V_EA+5}, v{t+10}, 4, v{t}")
    a(f"v_lshl_add_u32 v{V_EA+6}, v{t+10}, 3, v{t}")
    a(f"v_lshlrev_b32 v{V_EA+7}, 4, v{V_L}")
    a("s_mul_i32 s99, s42, 5120")
    a(f"s_add_u32 s99, s99, {SIDE_LDS}")

def side_dma(a):
    a("s_mov_b32 m0, s99")
    for j in range(5):
        if j: a("s_addk_i32 m0, 0x400")
        a("s_nop 0")
        a(f"buffer_load_dwordx4 v{V_EA+j}, s[84:87], s88 offen lds")

def side_finish(a):
    for t in range(5):
        for hh in range(2):
            if t < 4:
                a(f"ds_read_b64_tr_b16 {ar(4*t+2*hh, 2)}, v{V_EA+5} offset:{hh*2560 + 64*(t//2) + 8*(t%2)}")
            else:
                a(f"ds_read_b64_tr_b16 {ar(4*t+2*hh, 2)}, v{V_EA+6} offset:{hh*2560 + 128}")
    a("s_waitcnt lgkmcnt(0)")
    for t in range(5):
        if t < 4:
            a(f"buffer_store_dwordx4 {ar(4*t)}, v{V_EA+7}, s[20:23], s89 offen offset:{t*1024}")
        else:
            a(f"buffer_store_dwordx4 {ar(4*t)}, v{V_EA+7}, s[20:23], s90 offen")

def phi8(a, regs, tmp):
    n = len(regs)
    for i in range(0, n, 2):
        a(f"v_pk_mul_f32 {vr(tmp+i,2)}, {vr(regs[i],2)}, s[70:71]")
    for i in range(n):
        a(f"v_exp_f32 v{tmp+i}, v{tmp+i} clamp")
    for i in range(0, n, 2):
        a(f"v_pk_add_f32 {vr(regs[i],2)}, {vr(regs[i],2)}, s[72:73]")
    for i in range(0, n, 2):
        a(f"v_pk_add_f32 {vr(tmp+i,2)}, {vr(tmp+i,2)}, s[74:75]")
    for i in range(n):
        a(f"v_max_f32 v{regs[i]}, v{regs[i]}, v{tmp+i}")

def gen_k1():
    a = Asm()
    t = V_T
    stamp(a, 0)
    a("s_load_dwordx16 s[24:39], s[0:1], 0")
    a("s_load_dwordx2 s[40:41], s[0:1], 80")
    a("s_cmp_ge_u32 s2, 256")
    a("s_cbranch_scc1 L_k1_end")
    a(f"v_and_b32 v{V_L}, 63, v0")
    a(f"v_lshrrev_b32 v{t}, 6, v0")
    a("s_and_b32 s3, s2, 3")
    a(f"v_readfirstlane_b32 s42, v{t}")
    a("s_bfe_u32 s4, s2, 0x10002")
    a("s_lshr_b32 s5, s2, 3")
    a("s_mov_b32 s44, 0")
    a("s_mov_b32 s45, 0")
    a("s_cmp_lt_u32 s5, 8")
    a("s_cbranch_scc1 L_kv")
    a("s_cmp_lt_u32 s5, 12")
    a("s_cbranch_scc1 L_q")

    a("s_sub_u32 s6, s5, 12")
    a("s_mul_i32 s7, s6, 43")
    a("s_lshr_b32 s7, s7, 7")
    a("s_mul_i32 s49, s7, 3")
    a("s_sub_u32 s49, s6, s49")
    a("s_mul_i32 s6, s4, 7")
    a("s_add_u32 s6, s6, s7")
    a("s_cmp_lt_u32 s5, 30")
    a("s_cbranch_scc1 L_gu_dec")
    a("s_mov_b32 s6, 6")
    a("s_sub_u32 s49, s5, 30")
    a("s_lshl_b32 s7, s4, 1")
    a("s_add_u32 s49, s49, s7")
    a("s_cmp_eq_u32 s49, 3")
    a("s_cbranch_scc1 L_sideonly")
    a.label("L_gu_dec")
    a("s_mul_i32 s7, s3, 3")
    a("s_add_u32 s7, s7, s49")
    a("s_mul_i32 s48, s6, 12")
    a("s_add_u32 s48, s48, s7")
    a("s_mul_i32 s55, s6, 160")
    x_voffsets(a, 5, "s55")
    a(f"v_lshrrev_b32 v{t}, 4, v{V_L}")
    a(f"v_bfe_u32 v{t+1}, v{V_L}, 1, 3")
    a(f"v_xor_b32 v{t+1}, v{t+1}, v{t}")
    a(f"v_and_b32 v{t+2}, 1, v{V_L}")
    a(f"v_lshlrev_b32 v{t+2}, 4, v{t+2}")
    a("s_lshl_b32 s53, s42, 4")
    a(f"v_add_u32 v{t}, s53, v{t}")
    a("s_movk_i32 s54, 3072")
    a(f"v_mul_lo_u32 v{t}, v{t}, s54")
    a("s_lshl_b32 s53, s7, 8")
    a(f"v_add3_u32 v{t}, v{t}, v{t+2}, s53")
    for j in range(4):
        if (j >> 1) & 1:
            a(f"v_xor_b32 v{t+3}, 4, v{t+1}")
            a(f"v_lshl_add_u32 v{t+3}, v{t+3}, 5, v{t}")
        else:
            a(f"v_lshl_add_u32 v{t+3}, v{t+1}, 5, v{t}")
        a(f"v_add_u32 v{V_DMA+5+j}, {4*j*3072}, v{t+3}")
    a("s_mul_i32 s50, s42, 5120")
    a("s_lshl_b32 s51, s42, 12")
    a("s_add_u32 s52, s51, 36864")
    a("s_add_u32 s51, s51, 20480")
    a("s_waitcnt lgkmcnt(0)")
    srd(a, 8, 24, 25, 2048*1280)
    srd(a, 12, 32, 33, 640*3072)
    srd(a, 16, 34, 35, 640*3072)
    srd(a, 20, 40, 41, WSSZ)
    def dma_gu():
        s = []
        for j in range(5):
            s.append(("s_add_u32 m0, s46, s50" if j == 0 else "s_addk_i32 m0, 0x400",
                      f"buffer_load_dwordx4 v{V_DMA+j}, s[8:11], s44 offen lds"))
        for j in range(4):
            s.append(("s_add_u32 m0, s46, s51" if j == 0 else "s_addk_i32 m0, 0x400",
                      f"buffer_load_dwordx4 v{V_DMA+5+j}, s[12:15], s45 offen lds"))
        for j in range(4):
            s.append(("s_add_u32 m0, s46, s52" if j == 0 else "s_addk_i32 m0, 0x400",
                      f"buffer_load_dwordx4 v{V_DMA+5+j}, s[16:19], s45 offen lds"))
        return s
    TG = dict(name='gu', NT=5, NF=8, nfb=4, ksb=8192, hhb=1024, wstep=64*3072, tokrows=False, nside=5,
              fread=lambda f: (V_FB + (f % 4), 16384 * (f // 4)), dma=dma_gu,
              order=[((tt*8+f)*4, tt, f) for tt in range(5) for f in range(8)])
    issue_stage(a, TG, 0)
    stamp(a, 1)
    a("s_lshr_b32 s56, s42, 1")
    a("s_and_b32 s57, s42, 1")
    a("s_mul_i32 s53, s56, 10240")
    tok_bases(a, "s53")
    lane_grc(a)
    a(f"v_and_b32 v{t}, 1, v{t+8}")
    a(f"v_lshl_or_b32 v{t}, v{t}, 2, v{t+9}")
    a(f"v_lshlrev_b32 v{t+1}, 8, v{t+11}")
    a(f"v_lshl_add_u32 v{t+1}, v{t+10}, 3, v{t+1}")
    a(f"v_add_u32 v{t+1}, 20480, v{t+1}")
    a("s_lshl_b32 s53, s57, 2")
    for i in range(4):
        a(f"s_add_u32 s54, s53, {i}")
        a(f"v_xor_b32 v{t+2}, s54, v{t}")
        a(f"v_lshl_add_u32 v{V_FB+i}, v{t+2}, 5, v{t+1}")
    zero_acc(a, 160)
    issue_stage(a, TG, 1)
    side_setup(a)
    first_reads(a, TG)
    mainloop(a, TG)
    stamp(a, 3)
    a(f"s_mov_b32 s70, {NLOG2E}")
    a(f"s_mov_b32 s71, {NLOG2E}")
    a("s_mov_b32 s72, 1.0")
    a("s_mov_b32 s73, 1.0")
    a("s_mul_i32 s53, s6, 10")
    a("s_mul_i32 s54, s56, 5")
    a("s_add_u32 s53, s53, s54")
    a("s_mul_i32 s54, s53, 68")
    a("s_lshl_b32 s55, s7, 2")
    a("s_add_u32 s54, s54, s55")
    a("s_lshl_b32 s55, s57, 1")
    a("s_add_u32 s54, s54, s55")
    a("s_lshl_b32 s54, s54, 10")
    a("s_nop 4")
    for tt in range(5):
        a(f"s_cmp_ge_u32 s53, {128-tt}")
        a("s_cbranch_scc1 L_gu_epi_done")
        for u in range(2):
            G = (tt*8 + 2*u)*4
            U = (tt*8 + 4 + 2*u)*4
            tm = t + 16*u
            for i in range(0, 8, 2):
                a(f"v_pk_mul_f32 {vr(tm+i,2)}, {vr(G+i,2)}, s[70:71]")
            for i in range(8):
                a(f"v_exp_f32 v{tm+i}, v{tm+i}")
            for i in range(0, 8, 2):
                a(f"v_pk_add_f32 {vr(tm+i,2)}, {vr(tm+i,2)}, s[72:73]")
            for i in range(8):
                a(f"v_rcp_f32 v{tm+i}, v{tm+i}")
            for i in range(0, 8, 2):
                a(f"v_pk_mul_f32 {vr(tm+i,2)}, {vr(tm+i,2)}, {vr(U+i,2)}")
            for i in range(4):
                a(f"v_cvt_pk_bf16_f32 v{tm+8+i}, v{tm+2*i}, v{tm+2*i+1}")
            a(f"buffer_store_dwordx4 {vr(tm+8)}, v{V_EA+7}, s[20:23], s54 offen offset:{u*1024}")
        a(f"s_add_u32 s54, s54, {68*1024}")
    a.label("L_gu_epi_done")
    stamp(a, 4)
    a("s_waitcnt vmcnt(0)")
    a("s_barrier")
    side_finish(a)
    stamp(a, 5)
    stamp_flush(a, 6, STAMP)
    a("s_endpgm")

    a.label("L_sideonly")
    a("s_add_u32 s48, s3, 156")
    a("s_waitcnt lgkmcnt(0)")
    srd(a, 20, 40, 41, WSSZ)
    side_setup(a)
    side_dma(a)
    a(f"v_mov_b32 v{t}, 0")
    a(f"v_mov_b32 v{t+1}, 0")
    a(f"v_mov_b32 v{t+2}, 0")
    a(f"v_mov_b32 v{t+3}, 0")
    a(f"s_mov_b32 s53, {CNT}")
    a(f"buffer_store_dwordx4 {vr(t)}, v{V_EA+7}, s[20:23], s53 offen")
    a(f"buffer_store_dwordx4 {vr(t)}, v{V_EA+7}, s[20:23], s53 offen offset:1024")
    a("s_waitcnt vmcnt(0)")
    a("s_barrier")
    side_finish(a)
    a("s_endpgm")

    def dma_qkv():
        s = []
        for j in range(8):
            s.append(("s_add_u32 m0, s46, s50" if j == 0 else "s_addk_i32 m0, 0x400",
                      f"buffer_load_dwordx4 v{V_DMA+j}, s[8:11], s44 offen lds"))
        for j in range(5):
            s.append(("s_add_u32 m0, s46, s51" if j == 0 else "s_addk_i32 m0, 0x400",
                      f"buffer_load_dwordx4 v{V_DMA+8+j}, s[12:15], s45 offen lds"))
        return s
    def qkv_srds():
        a("s_lshl_b32 s50, s42, 13")
        a("s_mul_i32 s51, s42, 5120")
        a("s_add_u32 s51, s51, 32768")
        a("s_waitcnt lgkmcnt(0)")
        srd(a, 8, 24, 25, 2048*1280)
        srd(a, 12, 26, 27, 640*3840)
        srd(a, 20, 40, 41, WSSZ)
    def w_npi(j):
        a(f"v_add_u32 v{t}, s53, v{V_L}")
        if j: a(f"v_add_u32 v{t}, {64*j}, v{t}")
        div20(a, t+1, t)
        a(f"v_mul_u32_u24 v{t+2}, 20, v{t+1}")
        a(f"v_sub_u32 v{t+2}, v{t}, v{t+2}")
        a(f"v_bfe_u32 v{t+3}, v{t+1}, 3, 1")

    a.label("L_q")
    a("s_sub_u32 s6, s5, 8")
    a("s_lshl_b32 s7, s4, 2")
    a("s_add_u32 s6, s6, s7")
    a("s_lshl_b32 s55, s6, 8")
    a("s_lshl_b32 s56, s3, 4")
    x_voffsets(a, 8, "s55", xorreg="s56")
    a("s_mul_i32 s53, s42, 320")
    a("s_movk_i32 s54, 3840")
    a("s_mul_i32 s57, s3, 320")
    for j in range(5):
        w_npi(j)
        a(f"v_xor_b32 v{t+2}, v{t+2}, v{t+3}")
        a(f"v_lshrrev_b32 v{t+3}, 2, v{t+2}")
        a(f"v_and_b32 v{t+2}, 3, v{t+2}")
        a(f"v_mul_u32_u24 v{t+2}, 80, v{t+2}")
        a(f"v_lshl_add_u32 v{t+2}, v{t+3}, 4, v{t+2}")
        a(f"v_mul_lo_u32 v{t+1}, v{t+1}, s54")
        a(f"v_add3_u32 v{V_DMA+8+j}, v{t+1}, v{t+2}, s57")
    qkv_srds()
    srd(a, 16, 38, 39, 1280)
    a(f"v_lshlrev_b32 v{V_EA+7}, 4, v{V_L}")
    a(f"s_mov_b32 m0, {GWL}")
    a("s_nop 0")
    a(f"buffer_load_dwordx4 v{V_EA+7}, s[16:19], 0 offen lds")
    a(f"buffer_load_dwordx4 v{V_EA+7}, s[16:19], 0 offen offset:1024 lds")
    TQ = dict(name='q', NT=4, NF=10, nfb=2, ksb=10240, hhb=1280, wstep=64*3840, tokrows=False, nside=0, gate=True,
              fread=lambda f: (V_FB + (f % 2), 64 * (f // 2)), dma=dma_qkv,
              order=[((tt*10+f)*4, tt, f) for tt in range(4) for f in range(10)])
    issue_stage(a, TQ, 0)
    stamp(a, 1)
    a("s_lshl_b32 s53, s42, 13")
    tok_bases(a, "s53")
    lane_grc(a)
    a(f"v_and_b32 v{t}, 1, v{t+8}")
    a(f"v_xor_b32 v{t}, v{t}, v{t+10}")
    a(f"v_mul_u32_u24 v{t+1}, 320, v{t+11}")
    a(f"v_lshl_add_u32 v{t+1}, v{t}, 4, v{t+1}")
    a(f"v_add_u32 v{t+1}, 32768, v{t+1}")
    a(f"v_and_b32 v{t+2}, 1, v{t+10}")
    a(f"v_lshl_add_u32 v{V_FB}, v{t+2}, 3, v{t+1}")
    a(f"v_xor_b32 v{V_FB+1}, 8, v{V_FB}")
    a(f"v_lshlrev_b32 v{V_GW}, 4, v{t+8}")
    a(f"v_add_u32 v{V_GW}, {GWL}, v{V_GW}")
    zero_acc(a, 164)
    issue_stage(a, TQ, 1)
    first_reads(a, TQ)
    mainloop(a, TQ)
    stamp(a, 3)
    a(f"s_mov_b32 s70, {LOG2E}")
    a(f"s_mov_b32 s71, {LOG2E}")
    a(f"s_mov_b32 s72, {ONE_EPS}")
    a(f"s_mov_b32 s73, {ONE_EPS}")
    a(f"s_mov_b32 s74, {EPS}")
    a(f"s_mov_b32 s75, {EPS}")
    a("s_lshl_b32 s53, s6, 4")
    a("s_lshl_b32 s54, s42, 2")
    a("s_add_u32 s53, s53, s54")
    a("s_mul_i32 s55, s3, 5")
    a("s_add_u32 s55, s55, 48")
    a("s_nop 2")
    a(f"v_mul_f32 v{t}, {NLOG2E}, v{V_GL}")
    a(f"v_exp_f32 v{t}, v{t}")
    a(f"v_add_f32 v{t}, 1.0, v{t}")
    a(f"v_rcp_f32 v{t}, v{t}")
    a("s_add_u32 s54, s53, s3")
    a("s_lshl_b32 s54, s54, 6")
    a(f"s_add_u32 s54, s54, {GOFF}")
    a(f"v_lshlrev_b32 v{t+1}, 2, v{V_L}")
    a(f"v_cmp_gt_u32 vcc, 16, v{V_L}")
    a(f"v_mov_b32 v{t+2}, {OOB}")
    a(f"v_cndmask_b32 v{t+1}, v{t+2}, v{t+1}, vcc")
    a(f"buffer_store_dword v{t}, v{t+1}, s[20:23], s54 offen")
    for tt in range(4):
        a(f"s_xor_b32 s54, s3, {tt}")
        a("s_add_u32 s54, s54, s53")
        a("s_mul_i32 s54, s54, 68")
        a("s_add_u32 s54, s54, s55")
        a("s_lshl_b32 s54, s54, 10")
        a("s_add_u32 s56, s54, 4096")
        for i in range(5):
            R = (tt*10 + 2*i)*4
            tm = t + 4 + 16*(i % 2)
            phi8(a, list(range(R, R+8)), tm)
            for d in range(4):
                a(f"v_cvt_pk_bf16_f32 v{tm+8+d}, v{R+2*d}, v{R+2*d+1}")
            if i < 4:
                a(f"buffer_store_dwordx4 {vr(tm+8)}, v{V_EA+7}, s[20:23], s54 offen offset:{i*1024}")
            else:
                a(f"buffer_store_dwordx4 {vr(tm+8)}, v{V_EA+7}, s[20:23], s56 offen")
    stamp(a, 4)
    stamp(a, 5)
    stamp_flush(a, 6, STAMP)
    a("s_endpgm")

    a.label("L_kv")
    a("s_lshr_b32 s6, s5, 1")
    a("s_lshl_b32 s7, s4, 2")
    a("s_add_u32 s6, s6, s7")
    a("s_and_b32 s7, s5, 1")
    a("s_lshl_b32 s49, s3, 1")
    a("s_add_u32 s7, s7, s49")
    a("s_lshl_b32 s55, s6, 8")
    x_voffsets(a, 8, "s55")
    a("s_mul_i32 s53, s42, 320")
    a("s_movk_i32 s54, 3840")
    a("s_mul_i32 s57, s7, 160")
    a("s_add_u32 s57, s57, 1280")
    for j in range(5):
        w_npi(j)
        a(f"v_lshlrev_b32 v{t+3}, 1, v{t+3}")
        a(f"v_xor_b32 v{t+2}, v{t+2}, v{t+3}")
        a(f"v_mul_u32_u24 v{t+3}, 52, v{t+2}")
        a(f"v_lshrrev_b32 v{t+3}, 8, v{t+3}")
        a(f"v_mul_u32_u24 v{t+4}, 5, v{t+3}")
        a(f"v_sub_u32 v{t+2}, v{t+2}, v{t+4}")
        a(f"v_lshlrev_b32 v{t+2}, 4, v{t+2}")
        a(f"v_lshrrev_b32 v{t+4}, 1, v{t+3}")
        a(f"v_mad_u32_u24 v{t+2}, v{t+4}, 64, v{t+2}")
        a(f"v_lshl_add_u32 v{t+2}, v{t+4}, 4, v{t+2}")
        a(f"v_and_b32 v{t+3}, 1, v{t+3}")
        a(f"v_mul_u32_u24 v{t+3}, 1280, v{t+3}")
        a(f"v_add_u32 v{t+2}, v{t+2}, v{t+3}")
        a(f"v_mul_lo_u32 v{t+1}, v{t+1}, s54")
        a(f"v_add3_u32 v{V_DMA+8+j}, v{t+1}, v{t+2}, s57")
    qkv_srds()
    TK = dict(name='kv', NT=8, NF=5, nfb=2, ksb=10240, hhb=1280, wstep=64*3840, tokrows=True, nside=0,
              fread=lambda f: (V_FB + (f % 2), 64 * (f // 2)), dma=dma_qkv,
              order=[((tt*5+f)*4, tt, f) for tt in range(8) for f in range(5)])
    issue_stage(a, TK, 0)
    stamp(a, 1)
    a("s_lshr_b32 s56, s42, 1")
    a("s_and_b32 s57, s42, 1")
    a("s_lshl_b32 s53, s56, 14")
    tok_bases(a, "s53")
    lane_grc(a)
    a(f"v_and_b32 v{t}, 1, v{t+8}")
    a(f"v_lshlrev_b32 v{t}, 1, v{t}")
    a(f"v_lshrrev_b32 v{t+1}, 1, v{t+10}")
    a("s_mul_i32 s53, s57, 10")
    a(f"v_add_u32 v{t+1}, s53, v{t+1}")
    a(f"v_mul_u32_u24 v{t+2}, 320, v{t+11}")
    a(f"v_and_b32 v{t+3}, 1, v{t+10}")
    a(f"v_lshl_add_u32 v{t+2}, v{t+3}, 3, v{t+2}")
    a(f"v_add_u32 v{t+2}, 32768, v{t+2}")
    for p in range(2):
        a(f"v_add_u32 v{t+3}, {2*p}, v{t+1}")
        a(f"v_xor_b32 v{t+3}, v{t+3}, v{t}")
        a(f"v_lshl_add_u32 v{V_FB+p}, v{t+3}, 4, v{t+2}")
    zero_acc(a, 160)
    issue_stage(a, TK, 1)
    pairs = [(2,0),(3,0),(2,1),(3,1),(4,1),(3,2),(4,2),(None,0),(None,1),(None,2)]
    a(f"v_and_b32 v{t}, 15, v{V_L}")
    a(f"v_mov_b32 v{t+7}, {OOB}")
    for n, (Tv, Tk) in enumerate(pairs):
        a(f"v_add_u32 v{t+1}, {16*Tk}, v{t}")
        a(f"v_mul_u32_u24 v{t+2}, 96, v{t+1}")
        if Tv is not None:
            a(f"v_cmp_lt_u32 vcc, 19, v{t+1}")
            a(f"v_cndmask_b32 v{t+3}, 0, 5, vcc")
            a(f"v_add_u32 v{t+4}, {(4*Tv-10) & 0xffffffff}, v{t+8}")
            a(f"v_sub_u32 v{t+4}, v{t+4}, v{t+3}")
            a(f"v_lshl_add_u32 v{t+2}, v{t+4}, 4, v{t+2}")
            a(f"v_cmp_gt_u32 vcc, 5, v{t+4}")
        else:
            a(f"v_add_u32 v{t+2}, 80, v{t+2}")
            a(f"v_cmp_eq_u32 vcc, 0, v{t+8}")
        a(f"v_cndmask_b32 v{t+2}, v{t+7}, v{t+2}, vcc")
        a(f"v_cmp_gt_u32 vcc, 40, v{t+1}")
        a(f"v_cndmask_b32 v{V_EA+n}, v{t+7}, v{t+2}, vcc")
    first_reads(a, TK)
    mainloop(a, TK)
    stamp(a, 3)
    a(f"s_mov_b32 s70, {LOG2E}")
    a(f"s_mov_b32 s71, {LOG2E}")
    a(f"s_mov_b32 s72, {ONE_EPS}")
    a(f"s_mov_b32 s73, {ONE_EPS}")
    a(f"s_mov_b32 s74, {EPS}")
    a(f"s_mov_b32 s75, {EPS}")
    a("s_lshl_b32 s53, s6, 1")
    a("s_add_u32 s53, s53, s56")
    a("s_lshl_b32 s53, s53, 5")
    a("s_lshl_b32 s54, s7, 2")
    a("s_add_u32 s53, s53, s54")
    a("s_lshl_b32 s54, s57, 1")
    a("s_add_u32 s53, s53, s54")
    a("s_mul_i32 s53, s53, 1920")
    a(f"s_add_u32 s53, s53, {KVP}")
    a(f"v_and_b32 v{t}, 15, v{V_L}")
    a(f"v_cmp_gt_u32 s[76:77], 8, v{t}")
    a(f"v_cmp_eq_u32 vcc, 0, v{t}")
    a(f"v_mov_b32 v{t+1}, 0x3f803f80")
    for d in range(4):
        a(f"v_cndmask_b32 v{t+32+d}, 0, v{t+1}, vcc")
    ONES = t + 32
    KD = 120
    FR = t + 36
    for u in range(4):
        for half in range(2):
            tt = 2*u + half
            R0 = (tt*5)*4
            phi8(a, list(range(R0, R0+8)), t)
            R2 = (tt*5+2)*4
            for i in range(0, 4, 2):
                a(f"v_pk_mul_f32 {vr(t+8+i,2)}, {vr(R2+i,2)}, s[70:71]")
            for i in range(4):
                a(f"v_exp_f32 v{t+8+i}, v{t+8+i} clamp")
            for i in range(0, 4, 2):
                a(f"v_pk_add_f32 {vr(t+12+i,2)}, {vr(R2+i,2)}, s[72:73]")
            for i in range(0, 4, 2):
                a(f"v_pk_add_f32 {vr(t+8+i,2)}, {vr(t+8+i,2)}, s[74:75]")
            for i in range(4):
                a(f"v_max_f32 v{t+8+i}, v{t+8+i}, v{t+12+i}")
            for i in range(4):
                a(f"v_cndmask_b32 v{R2+i}, v{R2+i}, v{t+8+i}, s[76:77]")
            for f in range(5):
                R = (tt*5+f)*4
                for d in range(2):
                    a(f"v_cvt_pk_bf16_f32 v{FR+4*f+2*half+d}, v{R+2*d}, v{R+2*d+1}")
        for n, (Tv, Tk) in enumerate(pairs):
            A = vr(FR+4*Tv) if Tv is not None else vr(ONES)
            C = ar(KD+4*n) if u else "0"
            a(f"v_mfma_f32_16x16x32_bf16 {ar(KD+4*n)}, {A}, {vr(FR+4*Tk)}, {C}")
    for n in range(10):
        a(f"buffer_store_dwordx4 {ar(KD+4*n)}, v{V_EA+n}, s[20:23], s53 offen")
    stamp(a, 4)
    stamp(a, 5)
    stamp_flush(a, 6, STAMP)
    a.label("L_k1_end")
    a("s_endpgm")
    return a

def gen_k2():
    a = Asm()
    ACC = 0; PQ = 80
    VL = 160; VL16 = 161; VG = 164; VDEN = 168; T = 200
    VWA = 192
    VMS = 196
    D = 3
    SC = " sc1"
    def abuf(slot): return slot * 36
    AMZ = 108
    stamp(a, 0)
    a("s_load_dwordx2 s[24:25], s[0:1], 64")
    a("s_load_dwordx2 s[40:41], s[0:1], 80")
    a("s_cmp_ge_u32 s2, 256")
    a("s_cbranch_scc1 L_k2_end")
    a(f"v_and_b32 v{VL}, 63, v0")
    a(f"v_lshrrev_b32 v{T}, 6, v0")
    a(f"v_lshlrev_b32 v{VL16}, 4, v{VL}")
    a(f"v_readfirstlane_b32 s42, v{T}")
    a("s_bfe_u32 s3, s2, 0x20001")
    a("s_lshr_b32 s5, s2, 5")
    a("s_lshl_b32 s3, s3, 3")
    a("s_add_u32 s6, s3, s5")
    a("s_and_b32 s3, s2, 1")
    a("s_lshl_b32 s3, s3, 2")
    a("s_bfe_u32 s5, s2, 0x20003")
    a("s_add_u32 s7, s3, s5")
    a("s_lshl_b32 s3, s42, 7")
    a("s_add_u32 s3, s3, s6")
    a("s_mul_i32 s3, s3, 1920")
    a(f"s_add_u32 s50, s3, {KVP}")
    a(f"v_mov_b32 v{T+7}, {OOB}")
    a(f"v_cmp_gt_u32 vcc, 56, v{VL}")
    a(f"v_cndmask_b32 v{T+3}, v{T+7}, v{VL16}, vcc")
    a("s_lshl_b32 s3, s6, 3")
    a("s_add_u32 s3, s3, s7")
    a("s_mul_i32 s3, s3, 5120")
    a("s_lshr_b32 s4, s42, 1")
    a("s_mul_i32 s53, s4, 3072")
    a("s_add_u32 s3, s3, s53")
    a(f"s_add_u32 s51, s3, {WOF}")
    a("s_waitcnt lgkmcnt(0)")
    srd(a, 20, 40, 41, WSSZ)
    for p in range(4):
        a(f"buffer_load_dwordx4 {vr(8*p)}, v{VL16}, s[20:23], s50 offen")
        a(f"buffer_load_dwordx4 {vr(8*p+4)}, v{T+3}, s[20:23], s50 offen offset:1024")
        if p < 3: a(f"s_add_u32 s50, s50, {32*1920}")
    for t in range(3):
        a(f"buffer_load_dwordx4 {vr(128+4*t)}, v{VL16}, s[20:23], s51 offen offset:{t*1024}")
    a("s_lshl_b32 s3, s6, 2")
    a("s_mul_i32 s4, s42, 12")
    for tau in range(4):
        a(f"s_xor_b32 s5, s42, {tau}")
        a("s_add_u32 s5, s5, s3")
        a("s_mul_i32 s5, s5, 68")
        a("s_add_u32 s5, s5, s4")
        a(f"s_lshl_b32 s{44+tau}, s5, 10")
    a("s_mul_i32 s5, s7, 48")
    a("s_add_u32 s5, s5, s4")
    a("s_mul_i32 s5, s5, 5120")
    a(f"s_add_u32 s48, s5, {WDF}")
    a("s_add_u32 s49, s48, 4096")
    def loads_b(slot):
        b = abuf(slot)
        r = []
        for tau in range(4):
            r.append(f"buffer_load_dwordx4 {ar(b+4*tau)}, v{VL16}, s[20:23], s{44+tau} offen")
        for t in range(5):
            if t < 4:
                r.append(f"buffer_load_dwordx4 {ar(b+16+4*t)}, v{VL16}, s[20:23], s48 offen offset:{t*1024}")
            else:
                r.append(f"buffer_load_dwordx4 {ar(b+16+4*t)}, v{VL16}, s[20:23], s49 offen")
        adv = [f"s_addk_i32 s{44+tau}, 0x400" for tau in range(4)] + ["s_addk_i32 s48, 5120", "s_addk_i32 s49, 5120"]
        return r, adv
    for sl in range(2):
        r, adv = loads_b(sl)
        for x in r + adv: a(x)
    stamp(a, 1)
    srd(a, 8, 24, 25, 2048*1280)
    a("s_lshr_b32 s50, s6, 3")
    a("s_bfe_u32 s51, s6, 0x20001")
    a("s_and_b32 s52, s6, 1")
    a("s_and_b32 s54, s42, 1")
    a(f"v_and_b32 v{T}, 15, v{VL}")
    a(f"v_lshrrev_b32 v{T+1}, 4, v{VL}")
    a("s_lshl_b32 s3, s42, 11")
    a(f"v_add_u32 v{T+8}, s3, v{VL16}")
    a("s_lshl_b32 s3, s54, 4")
    a(f"v_add_u32 v{T+2}, s3, v{T}")
    a(f"v_mul_u32_u24 v{T+9}, 96, v{T+2}")
    a(f"v_lshl_add_u32 v{T+9}, v{T+1}, 5, v{T+9}")
    a(f"v_cmp_gt_u32 vcc, 20, v{T+2}")
    a(f"v_cmp_gt_u32 s[76:77], 3, v{T+1}")
    a("s_and_b64 s[76:77], s[76:77], vcc")
    a(f"v_mov_b32 v{T+10}, 1920")
    a(f"v_cndmask_b32 v{T+9}, v{T+10}, v{T+9}, s[76:77]")
    a("s_lshl_b32 s3, s51, 2")
    a("s_add_u32 s3, s3, s52")
    a("s_add_u32 s3, s3, 32")
    a(f"v_cmp_eq_u32 vcc, s3, v{VL}")
    a(f"v_mov_b32 v{T+4}, 0x3f80")
    a(f"v_cndmask_b32 v{T+11}, 0, v{T+4}, vcc")
    a("s_lshl_b32 s3, s54, 2")
    a(f"v_add_u32 v{T+4}, s3, v{T+1}")
    a("s_mul_i32 s4, s52, 5")
    a(f"v_add_u32 v{T+5}, s4, v{T+4}")
    a(f"v_lshrrev_b32 v{T+6}, 1, v{T+5}")
    a(f"v_mul_u32_u24 v{T+6}, 6144, v{T+6}")
    a(f"v_xor_b32 v{T+5}, s51, v{T+5}")
    a(f"v_and_b32 v{T+5}, 1, v{T+5}")
    a(f"v_lshl_add_u32 v{T+6}, v{T+5}, 3, v{T+6}")
    a(f"v_lshl_add_u32 v{T+6}, v{T}, 4, v{T+6}")
    a(f"v_cmp_gt_u32 vcc, 5, v{T+4}")
    a(f"v_cndmask_b32 v{VMS}, v{T+7}, v{T+6}, vcc")
    a("s_mul_i32 s3, s7, 20")
    a("s_mul_i32 s4, s50, 5")
    a("s_add_u32 s3, s3, s4")
    a("s_mul_i32 s3, s3, 6144")
    a("s_lshl_b32 s4, s51, 8")
    a("s_add_u32 s3, s3, s4")
    a("s_add_u32 s3, s3, s53")
    a(f"s_add_u32 s55, s3, {MZ}")
    a("s_lshl_b32 s3, s7, 8")
    a(f"s_add_u32 s56, s3, {CNT}")
    a(f"s_waitcnt vmcnt({3 + 18})")
    for i in range(0, 8, 2):
        a(f"v_pk_add_f32 {vr(i,2)}, {vr(i,2)}, {vr(8+i,2)}")
        a(f"v_pk_add_f32 {vr(16+i,2)}, {vr(16+i,2)}, {vr(24+i,2)}")
    for i in range(0, 8, 2):
        a(f"v_pk_add_f32 {vr(i,2)}, {vr(i,2)}, {vr(16+i,2)}")
    a(f"ds_write_b128 v{T+8}, {vr(0)}")
    a(f"ds_write_b128 v{T+8}, {vr(4)} offset:1024")
    a("s_waitcnt lgkmcnt(0)")
    a("s_barrier")
    for w in range(4):
        a(f"ds_read_b128 {vr(8*w)}, v{T+9} offset:{w*2048}")
        a(f"ds_read_b128 {vr(8*w+4)}, v{T+9} offset:{w*2048+16}")
    a("s_waitcnt lgkmcnt(0)")
    for i in range(0, 8, 2):
        a(f"v_pk_add_f32 {vr(i,2)}, {vr(i,2)}, {vr(8+i,2)}")
        a(f"v_pk_add_f32 {vr(16+i,2)}, {vr(16+i,2)}, {vr(24+i,2)}")
    for i in range(0, 8, 2):
        a(f"v_pk_add_f32 {vr(i,2)}, {vr(i,2)}, {vr(16+i,2)}")
    for d in range(4):
        a(f"v_cvt_pk_bf16_f32 v{8+d}, v{2*d}, v{2*d+1}")
    a(f"s_waitcnt vmcnt(18)")
    a("s_cmp_lt_u32 s42, 2")
    a("s_cbranch_scc1 L_k2_noones")
    a("v_mov_b32 v136, 0")
    a("v_mov_b32 v137, 0")
    a(f"v_mov_b32 v138, v{T+11}")
    a("v_mov_b32 v139, 0")
    a("s_nop 1")
    a.label("L_k2_noones")
    for t in range(3):
        a(f"v_mfma_f32_16x16x32_bf16 {vr(16+4*t)}, {vr(8)}, {vr(128+4*t)}, 0")
    for t in range(3):
        a(f"v_cvt_pk_bf16_f32 v{48+2*t}, v{16+4*t}, v{17+4*t}")
        a(f"v_cvt_pk_bf16_f32 v{49+2*t}, v{18+4*t}, v{19+4*t}")
        a(f"buffer_store_dwordx2 {vr(48+2*t,2)}, v{VMS}, s[20:23], s55 offen offset:{t*1024}{SC}")
    r, adv = loads_b(2)
    for x in r + adv: a(x)
    for i in range(0, 80, 2): a(f"v_mov_b64 v[{ACC+i}:{ACC+i+1}], 0")
    stamp(a, 2)
    def mf_b(slot):
        b = abuf(slot)
        return [f"v_mfma_f32_16x16x32_bf16 {vr(ACC+(tau*5+t)*4)}, {ar(b+16+4*t)}, {ar(b+4*tau)}, {vr(ACC+(tau*5+t)*4)}"
                for tau in range(4) for t in range(5)]
    a("s_mov_b32 s43, 0")
    a.label("L_k2_b")
    for sl in range(D):
        a(f"s_waitcnt vmcnt({9*(D-1)})")
        if sl == 1:
            a("s_cmp_lg_u32 s43, 0")
            a("s_cbranch_scc1 L_k2_nosig")
            a(f"v_mov_b32 v{T+4}, 1")
            a("s_mov_b64 exec, 1")
            a(f"buffer_atomic_add v{T+4}, off, s[20:23], s56 sc1")
            a("s_mov_b64 exec, -1")
            a.label("L_k2_nosig")
        for x in mf_b(sl): a(x)
        r, adv = loads_b(sl)
        for x in r + adv: a(x)
    a("s_add_u32 s43, s43, 1")
    a("s_cmp_lt_u32 s43, 2")
    a("s_cbranch_scc1 L_k2_b")
    a("s_mul_i32 s3, s42, -7168")
    a(f"s_add_u32 s3, s3, {39*1024}")
    for tau in range(4):
        a(f"s_add_u32 s{80+tau}, s{44+tau}, s3")
        a(f"s_add_u32 s{84+tau}, s{80+tau}, 4096")
    a("s_mul_i32 s3, s7, 20")
    a("s_mul_i32 s4, s42, 5")
    a("s_add_u32 s3, s3, s4")
    a("s_mul_i32 s3, s3, 6144")
    a(f"s_add_u32 s88, s3, {MZ}")
    a("s_add_u32 s89, s88, 4096")
    a(f"buffer_load_dword v{T}, off, s[20:23], s56{SC}")
    a(f"v_and_b32 v{T+8}, 15, v{VL}")
    a(f"v_lshlrev_b32 v{T+8}, 2, v{T+8}")
    a("s_lshl_b32 s3, s6, 2")
    for tau in range(4):
        a(f"s_xor_b32 s5, s42, {tau}")
        a("s_add_u32 s5, s5, s3")
        a("s_lshl_b32 s5, s5, 6")
        a(f"s_add_u32 s5, s5, {GOFF}")
        a(f"buffer_load_dword v{VG+tau}, v{T+8}, s[20:23], s5 offen")
    for tau in range(4):
        for i in range(5):
            if i < 4: a(f"buffer_load_dwordx4 {vr(PQ+(tau*5+i)*4)}, v{VL16}, s[20:23], s{80+tau} offen offset:{i*1024}")
            else: a(f"buffer_load_dwordx4 {vr(PQ+(tau*5+i)*4)}, v{VL16}, s[20:23], s{84+tau} offen")
    a(f"s_waitcnt vmcnt({18+25})")
    for x in mf_b(0): a(x)
    r, adv = loads_b(0)
    for x in r + adv: a(x)
    a(f"s_waitcnt vmcnt({9+25+9})")
    for x in mf_b(1): a(x)
    a(f"s_waitcnt vmcnt({24+9})")
    stamp(a, 3)
    a("s_mov_b32 s57, 0")
    a.label("L_k2_poll")
    a(f"v_readfirstlane_b32 s3, v{T}")
    a("s_cmp_ge_u32 s3, 128")
    a("s_cbranch_scc1 L_k2_ready")
    a("s_add_u32 s57, s57, 1")
    a("s_cmp_gt_u32 s57, 0x40000")
    a("s_cbranch_scc1 L_k2_ready")
    a("s_sleep 2")
    a(f"buffer_load_dword v{T}, off, s[20:23], s56{SC}")
    a("s_waitcnt vmcnt(0)")
    a("s_branch L_k2_poll")
    a.label("L_k2_ready")
    stamp(a, 4)
    for i in range(5):
        a(f"buffer_load_dwordx4 {ar(AMZ+(i*6+5)*4)}, v{VL16}, s[20:23], s89 offen offset:1024{SC}")
        a("s_addk_i32 s89, 6144")
    a(f"s_sub_u32 s89, s89, {5*6144}")
    r, adv = loads_b(1)
    for x in r + adv: a(x)
    for x in mf_b(2): a(x)
    r, adv = loads_b(2)
    for x in r: a(x)
    a("s_waitcnt vmcnt(18)")
    def mloads(i):
        for t in range(5):
            if t < 4: a(f"buffer_load_dwordx4 {ar(AMZ+(i*6+t)*4)}, v{VL16}, s[20:23], s88 offen offset:{t*1024}{SC}")
            else: a(f"buffer_load_dwordx4 {ar(AMZ+(i*6+t)*4)}, v{VL16}, s[20:23], s89 offen{SC}")
        a("s_addk_i32 s88, 6144")
        a("s_addk_i32 s89, 6144")
    for i in range(5): mloads(i)
    for i in range(5):
        for tau in range(4):
            C = vr(VDEN+4*tau) if i else "0"
            a(f"v_mfma_f32_16x16x32_bf16 {vr(VDEN+4*tau)}, {ar(AMZ+(i*6+5)*4)}, {vr(PQ+(tau*5+i)*4)}, {C}")
    for x in mf_b(0): a(x)
    a(f"v_bfe_u32 v{T+8}, v{VL}, 4, 1")
    a(f"v_cmp_eq_u32 s[76:77], 1, v{T+8}")
    a(f"s_mov_b32 s78, 0xffff0000")
    for tau in range(4):
        for e in range(2):
            a(f"v_add_f32 v{VDEN+4*tau+e}, {EPS}, v{VDEN+4*tau+e}")
    for tau in range(4):
        for e in range(2):
            a(f"v_rcp_f32 v{VDEN+4*tau+e}, v{VDEN+4*tau+e}")
    for tau in range(4):
        for e in range(2):
            a(f"v_mul_f32 v{VDEN+4*tau+e}, v{VDEN+4*tau+e}, v{VG+tau}")
    for tau in range(4):
        a(f"v_cndmask_b32 v{VDEN+4*tau+2}, v{VDEN+4*tau}, v{VDEN+4*tau+1}, s[76:77]")
        a(f"v_cndmask_b32 v{VDEN+4*tau+3}, v{VDEN+4*tau+1}, v{VDEN+4*tau}, s[76:77]")
    for tau in range(4):
        a(f"v_sub_f32 v{VG+tau}, 1.0, v{VG+tau}")
    def scale(i):
        for tau in range(4):
            F = PQ + (tau*5+i)*4
            tm = T + 8*(tau % 2) + 16
            for d in range(4):
                a(f"v_lshlrev_b32 v{tm+2*d}, 16, v{F+d}")
                a(f"v_and_b32 v{tm+2*d+1}, s78, v{F+d}")
            for d in range(4):
                if i < 2: rr = VDEN+4*tau
                elif i > 2: rr = VDEN+4*tau+1
                else: rr = VDEN+4*tau+2+(d//2)
                a(f"v_mul_f32 v{tm+2*d}, v{tm+2*d}, v{rr}")
                a(f"v_mul_f32 v{tm+2*d+1}, v{tm+2*d+1}, v{rr}")
            for d in range(4):
                a(f"v_cvt_pk_bf16_f32 v{F+d}, v{tm+2*d}, v{tm+2*d+1}")
    scale(0); scale(1)
    a("s_waitcnt vmcnt(34)")
    for x in mf_b(1): a(x)
    scale(2); scale(3)
    a("s_waitcnt vmcnt(25)")
    for x in mf_b(2): a(x)
    scale(4)
    for tau in range(4):
        for i in range(20):
            a(f"v_mul_f32 v{ACC+tau*20+i}, v{ACC+tau*20+i}, v{VG+tau}")
    for i in range(5):
        a(f"s_waitcnt vmcnt({20-5*i})")
        for tau in range(4):
            for t in range(5):
                A = ACC+(tau*5+t)*4
                a(f"v_mfma_f32_16x16x32_bf16 {vr(A)}, {ar(AMZ+(i*6+t)*4)}, {vr(PQ+(tau*5+i)*4)}, {vr(A)}")
    stamp(a, 5)
    RED = 8192
    for tau in range(1, 4):
        a(f"s_xor_b32 s3, s42, {tau}")
        a("s_mul_i32 s3, s3, 15360")
        a(f"s_add_u32 s3, s3, {(tau-1)*5120 + RED}")
        a(f"v_add_u32 v{VWA+tau}, s3, v{VL16}")
    a("s_mul_i32 s3, s42, 15360")
    a(f"s_add_u32 s3, s3, {RED}")
    a(f"v_add_u32 v{VWA}, s3, v{VL16}")
    for tau in range(1, 4):
        for t in range(5):
            a(f"ds_write_b128 v{VWA+tau}, {vr(ACC+(tau*5+t)*4)} offset:{t*1024}")
    a("s_waitcnt lgkmcnt(0)")
    a("s_barrier")
    for j in range(15):
        a(f"ds_read_b128 {vr(PQ+4*j)}, v{VWA} offset:{j*1024}")
    a("s_lshl_b32 s3, s6, 6")
    a("s_lshl_b32 s4, s42, 4")
    a("s_add_u32 s3, s3, s4")
    a("s_mul_i32 s3, s3, 1280")
    a("s_mul_i32 s4, s7, 160")
    a("s_add_u32 s3, s3, s4")
    a(f"v_and_b32 v{T}, 15, v{VL}")
    a(f"v_mul_u32_u24 v{T}, 1280, v{T}")
    a(f"v_lshrrev_b32 v{T+1}, 4, v{VL}")
    a(f"v_lshl_add_u32 v{T+2}, v{T+1}, 4, v{T}")
    a(f"v_lshl_add_u32 v{T+3}, v{T+1}, 3, v{T}")
    for src in range(3):
        a(f"s_waitcnt lgkmcnt({10-5*src})")
        for i in range(0, 20, 2):
            a(f"v_pk_add_f32 {vr(ACC+i,2)}, {vr(ACC+i,2)}, {vr(PQ+20*src+i,2)}")
    for i in range(10):
        a(f"v_cvt_pk_bf16_f32 v{T+8+i}, v{ACC+2*i}, v{ACC+2*i+1}")
    a(f"buffer_store_dwordx4 {vr(T+8)}, v{T+2}, s[8:11], s3 offen")
    a(f"buffer_store_dwordx4 {vr(T+12)}, v{T+2}, s[8:11], s3 offen offset:64")
    a(f"buffer_store_dwordx2 {vr(T+16,2)}, v{T+3}, s[8:11], s3 offen offset:128")
    stamp(a, 6)
    stamp_flush(a, 7, STAMP + 0x10000)
    a.label("L_k2_end")
    a("s_endpgm")
    return a

HDR = open('gated_mix__linear_attn_block__glu_gated_glu__prompt.s.ref').read().split('; Override launch')[0]

def finish(a):
    lines, n = hazard.pad(a.lines)
    bad = hazard.check_branches(lines)
    for b in bad: print("BRANCH HAZARD:", b, file=sys.stderr)
    print("hazard nops inserted:", n, file=sys.stderr)
    return "\n".join(lines) + "\n"

out = HDR
out += f"; @launch kernel=k1_kernel grid=(256,1,1) block=(256,1,1) lds={LDS1}\n"
out += f"; @launch kernel=k2_kernel grid=(256,1,1) block=(256,1,1) lds=69632\n"
out += '.amdgcn_target "amdgcn-amd-amdhsa--gfx950"\n'
out += kernel_begin("k1_kernel") + finish(gen_k1())
out += kernel_begin("k2_kernel") + finish(gen_k2())
out += kernel_desc("k1_kernel", 416, 256)
out += kernel_desc("k2_kernel", 488, 256)
open(sys.argv[1], "w").write(out)
```

```python
import sys
from asmlib import *
import hazard

AF   = 0
AFSZ = 128 * 68 * 1024
WDF  = 0x880000
MZ   = 0xA60000
WOF  = 0xB50000
KVP  = 0xC90000
GOFF = 0xD80000
CNT  = 0xD82000
WSSZ = 0xD84000
STAMP = 0xE00000
NPART = 16

STG = 53248
GWL = 3 * STG
LDS1 = 163840
OOB = 0x7FFF0000

LOG2E = 0x3FB8AA3B
NLOG2E = 0xBFB8AA3B
EPS = 0x358637BD
ONE_EPS = 0x3F800008

OPT = dict(stamp=0, nomfma=0, nodma=0, cpf=0)
for x in sys.argv[2:]:
    k, v = x.split('=')
    OPT[k] = int(v)

def vr(b, n=4): return f"v[{b}:{b+n-1}]"
def ar(b, n=4): return f"a[{b}:{b+n-1}]"

def srd(a, d, lo, hi, nrec):
    a(f"s_mov_b32 s{d}, s{lo}")
    a(f"s_mov_b32 s{d+1}, s{hi}")
    a(f"s_mov_b32 s{d+2}, {nrec}")
    a(f"s_mov_b32 s{d+3}, 0x00020000")

def stamp(a, idx):
    if OPT['stamp'] == 1:
        a(f"s_memrealtime s[{60+2*idx}:{61+2*idx}]")
    elif OPT['stamp'] == 2:
        a(f"s_memtime s[{60+2*idx}:{61+2*idx}]")

def stamp_flush(a, n, base, wgreg="s2", wavereg="s42"):
    if not OPT['stamp']: return
    a("s_waitcnt lgkmcnt(0) vmcnt(0)")
    a(f"s_lshl_b32 s58, {wgreg}, 2")
    a(f"s_add_u32 s58, s58, {wavereg}")
    a(f"s_lshl_b32 s58, s58, 6")
    a(f"s_add_u32 s58, s58, {base}")
    a(f"s_mov_b32 s22, 0x10000000")
    a("v_mov_b32 v250, 0")
    for i in range(n):
        a(f"v_mov_b32 v251, s{60+2*i}")
        a(f"buffer_store_dword v251, v250, s[20:23], s58 offen offset:{4*i}")
    a("s_waitcnt vmcnt(0)")

V_GL = 160
V_L = 164
V_DMA = 165
V_TB = 178
V_FB = 180
V_GW = 184
V_EA = 185
V_T = 200
A_SET = [0, 56]
A_GW = [112, 116]

def interleave(a, mfmas, fillers):
    for i, m in enumerate(mfmas):
        if not OPT['nomfma']:
            a(m)
        for f in fillers.get(i, []):
            a(f)
    for p in sorted(k for k in fillers if k >= len(mfmas)):
        for f in fillers[p]: a(f)

def mainloop(a, T):
    NT, NF = T['NT'], T['NF']
    name = T['name']
    def reads(ks, st):
        base = A_SET[st]
        r = []
        tok = [f"ds_read_b128 {ar(base+4*t)}, v{V_TB+ks} offset:{t*2048}" for t in range(NT)]
        fea = []
        for f in range(NF):
            vb, imm = T['fread'](f)
            for hh in range(2):
                fea.append(f"ds_read_b64_tr_b16 {ar(base+4*NT+4*f+2*hh, 2)}, v{vb} offset:{imm + ks*T['ksb'] + hh*T['hhb']}")
        r = tok[:1] + fea[:4] + tok[1:2] + fea[4:8] + tok[2:] + fea[8:]
        if T.get('gate'):
            r.append(f"ds_read_b128 {ar(A_GW[st])}, v{V_GW} offset:{ks*64}")
        return r
    def mfmas(st):
        base = A_SET[st]
        m = []
        for (acc, t, f) in T['order']:
            x = ar(base + 4*t); wf = ar(base + 4*NT + 4*f)
            if T['tokrows']:
                m.append(f"v_mfma_f32_16x16x32_bf16 {vr(acc)}, {x}, {wf}, {vr(acc)}")
            else:
                m.append(f"v_mfma_f32_16x16x32_bf16 {vr(acc)}, {wf}, {x}, {vr(acc)}")
        if T.get('gate'):
            m.append(f"v_mfma_f32_16x16x32_bf16 {vr(V_GL)}, {ar(A_GW[st])}, {ar(base)}, {vr(V_GL)}")
        return m
    addr_regs = [V_TB, V_TB+1] + [V_FB+i for i in range(T['nfb'])]
    seq = T['dma']() if not OPT['nodma'] else []
    H1 = 7
    def top(variant):
        a("s_barrier")
        for r in addr_regs:
            a(f"v_add_u32 v{r}, s47, v{r}")
        if T.get('gate'):
            a(f"v_add_u32 v{V_GW}, 128, v{V_GW}")
    a.label(f"L_{name}_A")
    a("s_waitcnt vmcnt(13) lgkmcnt(0)" if seq else "s_waitcnt lgkmcnt(0)")
    top('A')
    fl = {}
    for i, r in enumerate(reads(0, 0)):
        fl.setdefault(i, []).append(r)
    for j, (m0, ld) in enumerate(seq[:H1]):
        fl.setdefault(6*j+1, []).append(m0)
        fl.setdefault(6*j+2, []).append(ld)
    interleave(a, mfmas(1), fl)
    a.label(f"L_{name}_mid")
    a("s_waitcnt lgkmcnt(0)")
    fl = {}
    for i, r in enumerate(reads(1, 1)):
        fl.setdefault(i, []).append(r)
    for j, (m0, ld) in enumerate(seq[H1:]):
        fl.setdefault(6*j+2, []).append(m0)
        fl.setdefault(6*j+3, []).append(ld)
    fl.setdefault(34, []).extend(["s_add_u32 s44, s44, 128", f"s_add_u32 s45, s45, {T['wstep']}"])
    fl.setdefault(35, []).extend(["s_add_u32 s46, s46, s47", "s_add_u32 s43, s43, 1"])
    fl.setdefault(36, []).extend([f"s_cmp_eq_u32 s46, {2*STG}", f"s_cselect_b32 s47, {-2*STG & 0xffffffff}, s59"])
    fl.setdefault(37, []).extend([f"s_cmp_lt_u32 s43, 7"])
    interleave(a, mfmas(0), fl)
    a(f"s_cbranch_scc1 L_{name}_A")
    a("s_waitcnt vmcnt(13) lgkmcnt(0)")
    a(f"s_branch L_{name}_B2")
    a.label(f"L_{name}_B")
    a(f"s_waitcnt vmcnt({T['nside']}) lgkmcnt(0)")
    a.label(f"L_{name}_B2")
    top('B')
    if T['nside']:
        Ls = a.newlabel()
        a("s_cmp_eq_u32 s43, 7")
        a(f"s_cbranch_scc0 {Ls}")
        side_dma(a)
        a.label(Ls)
    fl = {}
    for i, r in enumerate(reads(0, 0)):
        fl.setdefault(i, []).append(r)
    fl.setdefault(37, []).extend([f"s_cmp_eq_u32 s43, 9"])
    interleave(a, mfmas(1), fl)
    a(f"s_cbranch_scc1 L_{name}_done")
    a("s_waitcnt lgkmcnt(0)")
    fl = {}
    for i, r in enumerate(reads(1, 1)):
        fl.setdefault(i, []).append(r)
    fl.setdefault(35, []).extend(["s_add_u32 s46, s46, s47", "s_add_u32 s43, s43, 1"])
    fl.setdefault(36, []).extend([f"s_cmp_eq_u32 s46, {2*STG}", f"s_cselect_b32 s47, {-2*STG & 0xffffffff}, s59"])
    interleave(a, mfmas(0), fl)
    a(f"s_branch L_{name}_B")
    a.label(f"L_{name}_done")

def issue_stage(a, T, st, lo=0, hi=13, adv=True):
    a(f"s_mov_b32 s46, {st*STG}")
    if not OPT['nodma']:
        for (m0, ld) in T['dma']()[lo:hi]:
            a(m0); a("s_nop 0"); a(ld)
    if adv:
        a("s_add_u32 s44, s44, 128")
        a(f"s_add_u32 s45, s45, {T['wstep']}")

def first_reads(a, T):
    if not OPT['nodma']:
        a("s_waitcnt vmcnt(13)")
    a("s_barrier")
    stamp(a, 2)
    NT, NF = T['NT'], T['NF']
    base = A_SET[0]
    for t in range(NT):
        a(f"ds_read_b128 {ar(base+4*t)}, v{V_TB} offset:{t*2048}")
    for f in range(NF):
        vb, imm = T['fread'](f)
        for hh in range(2):
            a(f"ds_read_b64_tr_b16 {ar(base+4*NT+4*f+2*hh, 2)}, v{vb} offset:{imm + hh*T['hhb']}")
    if T.get('gate'):
        a(f"ds_read_b128 {ar(A_GW[0])}, v{V_GW}")
    issue_stage(a, T, 2, 0, 7, adv=False)
    a("s_mov_b32 s43, -1")
    a(f"s_mov_b32 s59, {STG}")
    a(f"s_mov_b32 s47, {-2*STG & 0xffffffff}")
    a(f"s_branch L_{T['name']}_mid")

def zero_acc(a, n):
    for i in range(0, n, 2):
        a(f"v_mov_b64 v[{i}:{i+1}], 0")

def x_voffsets(a, nblk, srow0, xorreg=None):
    t = V_T
    a(f"s_mul_i32 s53, s42, {nblk*8}")
    a(f"v_lshrrev_b32 v{t}, 3, v{V_L}")
    a(f"v_add_u32 v{t}, s53, v{t}")
    a(f"v_and_b32 v{t+1}, 7, v{V_L}")
    a(f"s_movk_i32 s54, 1280")
    for j in range(nblk):
        a(f"v_add_u32 v{t+2}, {8*j}, v{t}")
        a(f"v_bfe_u32 v{t+3}, v{t+2}, 1, 3")
        a(f"v_xor_b32 v{t+3}, v{t+3}, v{t+1}")
        if xorreg is not None:
            a(f"v_xor_b32 v{t+2}, {xorreg}, v{t+2}")
        a(f"v_add_u32 v{t+2}, {srow0}, v{t+2}")
        a(f"v_mul_lo_u32 v{t+2}, v{t+2}, s54")
        a(f"v_lshl_add_u32 v{V_DMA+j}, v{t+3}, 4, v{t+2}")

def tok_bases(a, stokoff):
    t = V_T
    a(f"v_and_b32 v{t}, 15, v{V_L}")
    a(f"v_lshrrev_b32 v{t+1}, 4, v{V_L}")
    a(f"v_lshrrev_b32 v{t+2}, 1, v{t}")
    a(f"v_xor_b32 v{t+2}, v{t+2}, v{t+1}")
    a(f"v_lshlrev_b32 v{t+3}, 7, v{t}")
    a(f"v_add_u32 v{t+3}, {stokoff}, v{t+3}")
    a(f"v_lshl_add_u32 v{V_TB}, v{t+2}, 4, v{t+3}")
    a(f"v_xor_b32 v{V_TB+1}, 64, v{V_TB}")

def lane_grc(a):
    t = V_T
    a(f"v_lshrrev_b32 v{t+8}, 4, v{V_L}")
    a(f"v_bfe_u32 v{t+9}, v{V_L}, 2, 2")
    a(f"v_and_b32 v{t+10}, 3, v{V_L}")
    a(f"v_lshl_add_u32 v{t+11}, v{t+8}, 3, v{t+9}")

def div20(a, dst, src, tmp_s="s54"):
    a(f"v_mul_u32_u24 v{dst}, 3277, v{src}")
    a(f"v_lshrrev_b32 v{dst}, 16, v{dst}")

SIDE_LDS = STG
def side_setup(a):
    t = V_T
    a(f"s_mov_b32 s86, {640*1280}")
    a("s_cmp_lt_u32 s48, 96")
    a("s_cselect_b32 s84, s36, s28")
    a("s_cselect_b32 s85, s37, s29")
    a(f"s_cselect_b32 s86, {1536*1280}, s86")
    a("s_mov_b32 s87, 0x00020000")
    a("s_cselect_b32 s91, 0, 96")
    a("s_cselect_b32 s92, 32, 20")
    a("s_cselect_b64 s[94:95], -1, 0")
    a("s_sub_u32 s91, s48, s91")
    a("s_and_b32 s93, s91, 1")
    a("s_lshr_b32 s91, s91, 1")
    a("s_mul_i32 s88, s91, s92")
    a("s_mul_i32 s88, s88, 1280")
    a("s_mul_i32 s96, s93, 640")
    a("s_add_u32 s88, s88, s96")
    a("s_lshl_b32 s96, s93, 2")
    a("s_add_u32 s96, s96, s42")
    a("s_mul_i32 s97, s96, 48")
    a("s_add_u32 s97, s97, s91")
    a("s_mul_i32 s97, s97, 5120")
    a(f"s_add_u32 s97, s97, {WDF}")
    a("s_lshl_b32 s98, s91, 3")
    a("s_add_u32 s98, s98, s96")
    a("s_mul_i32 s98, s98, 5120")
    a(f"s_add_u32 s98, s98, {WOF}")
    a("s_cmp_lt_u32 s48, 96")
    a("s_cselect_b32 s89, s97, s98")
    a("s_add_u32 s90, s89, 4096")
    a("s_mul_i32 s53, s42, 320")
    a("s_movk_i32 s54, 1280")
    a(f"v_mov_b32 v{t+7}, {OOB}")
    for j in range(5):
        a(f"v_add_u32 v{t}, s53, v{V_L}")
        if j: a(f"v_add_u32 v{t}, {64*j}, v{t}")
        a(f"v_mul_u32_u24 v{t+1}, 1639, v{t}")
        a(f"v_lshrrev_b32 v{t+1}, 16, v{t+1}")
        a(f"v_mul_u32_u24 v{t+2}, 40, v{t+1}")
        a(f"v_sub_u32 v{t+2}, v{t}, v{t+2}")
        a(f"v_bfe_u32 v{t+3}, v{t+1}, 2, 1")
        a(f"v_lshlrev_b32 v{t+3}, 4, v{t+3}")
        a(f"v_lshrrev_b32 v{t+4}, 3, v{t+1}")
        a(f"v_lshl_add_u32 v{t+3}, v{t+4}, 2, v{t+3}")
        a(f"v_and_b32 v{t+4}, 3, v{t+1}")
        a(f"v_add_u32 v{t+3}, v{t+3}, v{t+4}")
        a(f"v_cndmask_b32 v{t+3}, v{t+1}, v{t+3}, s[94:95]")
        a(f"v_cmp_gt_u32 vcc, s92, v{t+3}")
        a(f"v_mul_lo_u32 v{t+3}, v{t+3}, s54")
        a(f"v_lshl_add_u32 v{t+3}, v{t+2}, 4, v{t+3}")
        a(f"v_cndmask_b32 v{V_EA+j}, v{t+7}, v{t+3}, vcc")
    lane_grc(a)
    a("s_mul_i32 s53, s42, 160")
    a(f"s_add_u32 s53, s53, {SIDE_LDS}")
    a(f"v_mul_u32_u24 v{t}, 640, v{t+11}")
    a(f"v_add_u32 v{t}, s53, v{t}")
    a(f"v_lshl_add_u32 v{V_EA+5}, v{t+10}, 4, v{t}")
    a(f"v_lshl_add_u32 v{V_EA+6}, v{t+10}, 3, v{t}")
    a(f"v_lshlrev_b32 v{V_EA+7}, 4, v{V_L}")
    a("s_mul_i32 s99, s42, 5120")
    a(f"s_add_u32 s99, s99, {SIDE_LDS}")

def side_dma(a):
    a("s_mov_b32 m0, s99")
    for j in range(5):
        if j: a("s_addk_i32 m0, 0x400")
        a("s_nop 0")
        a(f"buffer_load_dwordx4 v{V_EA+j}, s[84:87], s88 offen lds")

def side_finish(a):
    for t in range(5):
        for hh in range(2):
            if t < 4:
                a(f"ds_read_b64_tr_b16 {ar(4*t+2*hh, 2)}, v{V_EA+5} offset:{hh*2560 + 64*(t//2) + 8*(t%2)}")
            else:
                a(f"ds_read_b64_tr_b16 {ar(4*t+2*hh, 2)}, v{V_EA+6} offset:{hh*2560 + 128}")
    a("s_waitcnt lgkmcnt(0)")
    for t in range(5):
        if t < 4:
            a(f"buffer_store_dwordx4 {ar(4*t)}, v{V_EA+7}, s[20:23], s89 offen offset:{t*1024}")
        else:
            a(f"buffer_store_dwordx4 {ar(4*t)}, v{V_EA+7}, s[20:23], s90 offen")

def phi8(a, regs, tmp):
    n = len(regs)
    for i in range(0, n, 2):
        a(f"v_pk_mul_f32 {vr(tmp+i,2)}, {vr(regs[i],2)}, s[70:71]")
    for i in range(n):
        a(f"v_exp_f32 v{tmp+i}, v{tmp+i} clamp")
    for i in range(0, n, 2):
        a(f"v_pk_add_f32 {vr(regs[i],2)}, {vr(regs[i],2)}, s[72:73]")
    for i in range(0, n, 2):
        a(f"v_pk_add_f32 {vr(tmp+i,2)}, {vr(tmp+i,2)}, s[74:75]")
    for i in range(n):
        a(f"v_max_f32 v{regs[i]}, v{regs[i]}, v{tmp+i}")

def gen_k1():
    a = Asm()
    t = V_T
    stamp(a, 0)
    a("s_load_dwordx16 s[24:39], s[0:1], 0")
    a("s_load_dwordx2 s[40:41], s[0:1], 80")
    a("s_cmp_ge_u32 s2, 256")
    a("s_cbranch_scc1 L_k1_end")
    if OPT['cpf']:
        a("s_getpc_b64 s[100:101]")
        a(f"v_lshlrev_b32 v{t+20}, 7, v0")
        a(f"global_load_dword v{t+21}, v{t+20}, s[100:101]")
        a(f"v_add_u32 v{t+20}, 0x8000, v{t+20}")
        a(f"v_cmp_gt_u32 vcc, CODE_END-k1_kernel-256, v{t+20}")
        a("s_and_saveexec_b64 s[98:99], vcc")
        a("s_cbranch_execz L_cpf_skip")
        a(f"global_load_dword v{t+22}, v{t+20}, s[100:101]")
        a.label("L_cpf_skip")
        a("s_mov_b64 exec, s[98:99]")
    a(f"v_and_b32 v{V_L}, 63, v0")
    a(f"v_lshrrev_b32 v{t}, 6, v0")
    a("s_and_b32 s3, s2, 3")
    a(f"v_readfirstlane_b32 s42, v{t}")
    a("s_bfe_u32 s4, s2, 0x10002")
    a("s_lshr_b32 s5, s2, 3")
    a("s_mov_b32 s44, 0")
    a("s_mov_b32 s45, 0")
    a("s_cmp_lt_u32 s5, 8")
    a("s_cbranch_scc1 L_kv")
    a("s_cmp_lt_u32 s5, 12")
    a("s_cbranch_scc1 L_q")

    a("s_sub_u32 s6, s5, 12")
    a("s_mul_i32 s7, s6, 43")
    a("s_lshr_b32 s7, s7, 7")
    a("s_mul_i32 s49, s7, 3")
    a("s_sub_u32 s49, s6, s49")
    a("s_mul_i32 s6, s4, 7")
    a("s_add_u32 s6, s6, s7")
    a("s_cmp_lt_u32 s5, 30")
    a("s_cbranch_scc1 L_gu_dec")
    a("s_mov_b32 s6, 6")
    a("s_sub_u32 s49, s5, 30")
    a("s_lshl_b32 s7, s4, 1")
    a("s_add_u32 s49, s49, s7")
    a("s_cmp_eq_u32 s49, 3")
    a("s_cbranch_scc1 L_sideonly")
    a.label("L_gu_dec")
    a("s_mul_i32 s7, s3, 3")
    a("s_add_u32 s7, s7, s49")
    a("s_mul_i32 s48, s6, 12")
    a("s_add_u32 s48, s48, s7")
    a("s_mul_i32 s55, s6, 160")
    x_voffsets(a, 5, "s55")
    a(f"v_lshrrev_b32 v{t}, 4, v{V_L}")
    a(f"v_bfe_u32 v{t+1}, v{V_L}, 1, 3")
    a(f"v_xor_b32 v{t+1}, v{t+1}, v{t}")
    a(f"v_and_b32 v{t+2}, 1, v{V_L}")
    a(f"v_lshlrev_b32 v{t+2}, 4, v{t+2}")
    a("s_lshl_b32 s53, s42, 4")
    a(f"v_add_u32 v{t}, s53, v{t}")
    a("s_movk_i32 s54, 3072")
    a(f"v_mul_lo_u32 v{t}, v{t}, s54")
    a("s_lshl_b32 s53, s7, 8")
    a(f"v_add3_u32 v{t}, v{t}, v{t+2}, s53")
    for j in range(4):
        if (j >> 1) & 1:
            a(f"v_xor_b32 v{t+3}, 4, v{t+1}")
            a(f"v_lshl_add_u32 v{t+3}, v{t+3}, 5, v{t}")
        else:
            a(f"v_lshl_add_u32 v{t+3}, v{t+1}, 5, v{t}")
        a(f"v_add_u32 v{V_DMA+5+j}, {4*j*3072}, v{t+3}")
    a("s_mul_i32 s50, s42, 5120")
    a("s_lshl_b32 s51, s42, 12")
    a("s_add_u32 s52, s51, 36864")
    a("s_add_u32 s51, s51, 20480")
    a("s_waitcnt lgkmcnt(0)")
    srd(a, 8, 24, 25, 2048*1280)
    srd(a, 12, 32, 33, 640*3072)
    srd(a, 16, 34, 35, 640*3072)
    srd(a, 20, 40, 41, WSSZ)
    def dma_gu():
        s = []
        for j in range(5):
            s.append(("s_add_u32 m0, s46, s50" if j == 0 else "s_addk_i32 m0, 0x400",
                      f"buffer_load_dwordx4 v{V_DMA+j}, s[8:11], s44 offen lds"))
        for j in range(4):
            s.append(("s_add_u32 m0, s46, s51" if j == 0 else "s_addk_i32 m0, 0x400",
                      f"buffer_load_dwordx4 v{V_DMA+5+j}, s[12:15], s45 offen lds"))
        for j in range(4):
            s.append(("s_add_u32 m0, s46, s52" if j == 0 else "s_addk_i32 m0, 0x400",
                      f"buffer_load_dwordx4 v{V_DMA+5+j}, s[16:19], s45 offen lds"))
        return s
    TG = dict(name='gu', NT=5, NF=8, nfb=4, ksb=8192, hhb=1024, wstep=64*3072, tokrows=False, nside=5,
              fread=lambda f: (V_FB + (f % 4), 16384 * (f // 4)), dma=dma_gu,
              order=[((tt*8+f)*4, tt, f) for tt in range(5) for f in range(8)])
    issue_stage(a, TG, 0)
    stamp(a, 1)
    a("s_lshr_b32 s56, s42, 1")
    a("s_and_b32 s57, s42, 1")
    a("s_mul_i32 s53, s56, 10240")
    tok_bases(a, "s53")
    lane_grc(a)
    a(f"v_and_b32 v{t}, 1, v{t+8}")
    a(f"v_lshl_or_b32 v{t}, v{t}, 2, v{t+9}")
    a(f"v_lshlrev_b32 v{t+1}, 8, v{t+11}")
    a(f"v_lshl_add_u32 v{t+1}, v{t+10}, 3, v{t+1}")
    a(f"v_add_u32 v{t+1}, 20480, v{t+1}")
    a("s_lshl_b32 s53, s57, 2")
    for i in range(4):
        a(f"s_add_u32 s54, s53, {i}")
        a(f"v_xor_b32 v{t+2}, s54, v{t}")
        a(f"v_lshl_add_u32 v{V_FB+i}, v{t+2}, 5, v{t+1}")
    zero_acc(a, 160)
    issue_stage(a, TG, 1)
    side_setup(a)
    first_reads(a, TG)
    mainloop(a, TG)
    stamp(a, 3)
    a(f"s_mov_b32 s70, {NLOG2E}")
    a(f"s_mov_b32 s71, {NLOG2E}")
    a("s_mov_b32 s72, 1.0")
    a("s_mov_b32 s73, 1.0")
    a("s_mul_i32 s53, s6, 10")
    a("s_mul_i32 s54, s56, 5")
    a("s_add_u32 s53, s53, s54")
    a("s_mul_i32 s54, s53, 68")
    a("s_lshl_b32 s55, s7, 2")
    a("s_add_u32 s54, s54, s55")
    a("s_lshl_b32 s55, s57, 1")
    a("s_add_u32 s54, s54, s55")
    a("s_lshl_b32 s54, s54, 10")
    a("s_nop 4")
    for tt in range(5):
        a(f"s_cmp_ge_u32 s53, {128-tt}")
        a("s_cbranch_scc1 L_gu_epi_done")
        for u in range(2):
            G = (tt*8 + 2*u)*4
            U = (tt*8 + 4 + 2*u)*4
            tm = t + 16*u
            for i in range(0, 8, 2):
                a(f"v_pk_mul_f32 {vr(tm+i,2)}, {vr(G+i,2)}, s[70:71]")
            for i in range(8):
                a(f"v_exp_f32 v{tm+i}, v{tm+i}")
            for i in range(0, 8, 2):
                a(f"v_pk_add_f32 {vr(tm+i,2)}, {vr(tm+i,2)}, s[72:73]")
            for i in range(8):
                a(f"v_rcp_f32 v{tm+i}, v{tm+i}")
            for i in range(0, 8, 2):
                a(f"v_pk_mul_f32 {vr(tm+i,2)}, {vr(tm+i,2)}, {vr(U+i,2)}")
            for i in range(4):
                a(f"v_cvt_pk_bf16_f32 v{tm+8+i}, v{tm+2*i}, v{tm+2*i+1}")
            a(f"buffer_store_dwordx4 {vr(tm+8)}, v{V_EA+7}, s[20:23], s54 offen offset:{u*1024}")
        a(f"s_add_u32 s54, s54, {68*1024}")
    a.label("L_gu_epi_done")
    stamp(a, 4)
    a("s_waitcnt vmcnt(0)")
    a("s_barrier")
    side_finish(a)
    stamp(a, 5)
    stamp_flush(a, 6, STAMP)
    a("s_endpgm")

    a.label("L_sideonly")
    a("s_add_u32 s48, s3, 156")
    a("s_waitcnt lgkmcnt(0)")
    srd(a, 20, 40, 41, WSSZ)
    side_setup(a)
    side_dma(a)
    a(f"v_mov_b32 v{t}, 0")
    a(f"v_mov_b32 v{t+1}, 0")
    a(f"v_mov_b32 v{t+2}, 0")
    a(f"v_mov_b32 v{t+3}, 0")
    a(f"s_mov_b32 s53, {CNT}")
    a(f"buffer_store_dwordx4 {vr(t)}, v{V_EA+7}, s[20:23], s53 offen")
    a(f"buffer_store_dwordx4 {vr(t)}, v{V_EA+7}, s[20:23], s53 offen offset:1024")
    a("s_waitcnt vmcnt(0)")
    a("s_barrier")
    side_finish(a)
    a("s_endpgm")

    def dma_qkv():
        s = []
        for j in range(8):
            s.append(("s_add_u32 m0, s46, s50" if j == 0 else "s_addk_i32 m0, 0x400",
                      f"buffer_load_dwordx4 v{V_DMA+j}, s[8:11], s44 offen lds"))
        for j in range(5):
            s.append(("s_add_u32 m0, s46, s51" if j == 0 else "s_addk_i32 m0, 0x400",
                      f"buffer_load_dwordx4 v{V_DMA+8+j}, s[12:15], s45 offen lds"))
        return s
    def qkv_srds():
        a("s_lshl_b32 s50, s42, 13")
        a("s_mul_i32 s51, s42, 5120")
        a("s_add_u32 s51, s51, 32768")
        a("s_waitcnt lgkmcnt(0)")
        srd(a, 8, 24, 25, 2048*1280)
        srd(a, 12, 26, 27, 640*3840)
        srd(a, 20, 40, 41, WSSZ)
    def w_npi(j):
        a(f"v_add_u32 v{t}, s53, v{V_L}")
        if j: a(f"v_add_u32 v{t}, {64*j}, v{t}")
        div20(a, t+1, t)
        a(f"v_mul_u32_u24 v{t+2}, 20, v{t+1}")
        a(f"v_sub_u32 v{t+2}, v{t}, v{t+2}")
        a(f"v_bfe_u32 v{t+3}, v{t+1}, 3, 1")

    a.label("L_q")
    a("s_sub_u32 s6, s5, 8")
    a("s_lshl_b32 s7, s4, 2")
    a("s_add_u32 s6, s6, s7")
    a("s_lshl_b32 s55, s6, 8")
    a("s_lshl_b32 s56, s3, 4")
    x_voffsets(a, 8, "s55", xorreg="s56")
    a("s_mul_i32 s53, s42, 320")
    a("s_movk_i32 s54, 3840")
    a("s_mul_i32 s57, s3, 320")
    for j in range(5):
        w_npi(j)
        a(f"v_xor_b32 v{t+2}, v{t+2}, v{t+3}")
        a(f"v_lshrrev_b32 v{t+3}, 2, v{t+2}")
        a(f"v_and_b32 v{t+2}, 3, v{t+2}")
        a(f"v_mul_u32_u24 v{t+2}, 80, v{t+2}")
        a(f"v_lshl_add_u32 v{t+2}, v{t+3}, 4, v{t+2}")
        a(f"v_mul_lo_u32 v{t+1}, v{t+1}, s54")
        a(f"v_add3_u32 v{V_DMA+8+j}, v{t+1}, v{t+2}, s57")
    qkv_srds()
    srd(a, 16, 38, 39, 1280)
    a(f"v_lshlrev_b32 v{V_EA+7}, 4, v{V_L}")
    a(f"s_mov_b32 m0, {GWL}")
    a("s_nop 0")
    a(f"buffer_load_dwordx4 v{V_EA+7}, s[16:19], 0 offen lds")
    a(f"buffer_load_dwordx4 v{V_EA+7}, s[16:19], 0 offen offset:1024 lds")
    TQ = dict(name='q', NT=4, NF=10, nfb=2, ksb=10240, hhb=1280, wstep=64*3840, tokrows=False, nside=0, gate=True,
              fread=lambda f: (V_FB + (f % 2), 64 * (f // 2)), dma=dma_qkv,
              order=[((tt*10+f)*4, tt, f) for tt in range(4) for f in range(10)])
    issue_stage(a, TQ, 0)
    stamp(a, 1)
    a("s_lshl_b32 s53, s42, 13")
    tok_bases(a, "s53")
    lane_grc(a)
    a(f"v_and_b32 v{t}, 1, v{t+8}")
    a(f"v_xor_b32 v{t}, v{t}, v{t+10}")
    a(f"v_mul_u32_u24 v{t+1}, 320, v{t+11}")
    a(f"v_lshl_add_u32 v{t+1}, v{t}, 4, v{t+1}")
    a(f"v_add_u32 v{t+1}, 32768, v{t+1}")
    a(f"v_and_b32 v{t+2}, 1, v{t+10}")
    a(f"v_lshl_add_u32 v{V_FB}, v{t+2}, 3, v{t+1}")
    a(f"v_xor_b32 v{V_FB+1}, 8, v{V_FB}")
    a(f"v_lshlrev_b32 v{V_GW}, 4, v{t+8}")
    a(f"v_add_u32 v{V_GW}, {GWL}, v{V_GW}")
    zero_acc(a, 164)
    issue_stage(a, TQ, 1)
    first_reads(a, TQ)
    mainloop(a, TQ)
    stamp(a, 3)
    a(f"s_mov_b32 s70, {LOG2E}")
    a(f"s_mov_b32 s71, {LOG2E}")
    a(f"s_mov_b32 s72, {ONE_EPS}")
    a(f"s_mov_b32 s73, {ONE_EPS}")
    a(f"s_mov_b32 s74, {EPS}")
    a(f"s_mov_b32 s75, {EPS}")
    a("s_lshl_b32 s53, s6, 4")
    a("s_lshl_b32 s54, s42, 2")
    a("s_add_u32 s53, s53, s54")
    a("s_mul_i32 s55, s3, 5")
    a("s_add_u32 s55, s55, 48")
    a("s_nop 2")
    a(f"v_mul_f32 v{t}, {NLOG2E}, v{V_GL}")
    a(f"v_exp_f32 v{t}, v{t}")
    a(f"v_add_f32 v{t}, 1.0, v{t}")
    a(f"v_rcp_f32 v{t}, v{t}")
    a("s_add_u32 s54, s53, s3")
    a("s_lshl_b32 s54, s54, 6")
    a(f"s_add_u32 s54, s54, {GOFF}")
    a(f"v_lshlrev_b32 v{t+1}, 2, v{V_L}")
    a(f"v_cmp_gt_u32 vcc, 16, v{V_L}")
    a(f"v_mov_b32 v{t+2}, {OOB}")
    a(f"v_cndmask_b32 v{t+1}, v{t+2}, v{t+1}, vcc")
    a(f"buffer_store_dword v{t}, v{t+1}, s[20:23], s54 offen")
    for tt in range(4):
        a(f"s_xor_b32 s54, s3, {tt}")
        a("s_add_u32 s54, s54, s53")
        a("s_mul_i32 s54, s54, 68")
        a("s_add_u32 s54, s54, s55")
        a("s_lshl_b32 s54, s54, 10")
        a("s_add_u32 s56, s54, 4096")
        for i in range(5):
            R = (tt*10 + 2*i)*4
            tm = t + 4 + 16*(i % 2)
            phi8(a, list(range(R, R+8)), tm)
            for d in range(4):
                a(f"v_cvt_pk_bf16_f32 v{tm+8+d}, v{R+2*d}, v{R+2*d+1}")
            if i < 4:
                a(f"buffer_store_dwordx4 {vr(tm+8)}, v{V_EA+7}, s[20:23], s54 offen offset:{i*1024}")
            else:
                a(f"buffer_store_dwordx4 {vr(tm+8)}, v{V_EA+7}, s[20:23], s56 offen")
    stamp(a, 4)
    stamp(a, 5)
    stamp_flush(a, 6, STAMP)
    a("s_endpgm")

    a.label("L_kv")
    a("s_lshr_b32 s6, s5, 1")
    a("s_lshl_b32 s7, s4, 2")
    a("s_add_u32 s6, s6, s7")
    a("s_and_b32 s7, s5, 1")
    a("s_lshl_b32 s49, s3, 1")
    a("s_add_u32 s7, s7, s49")
    a("s_lshl_b32 s55, s6, 8")
    x_voffsets(a, 8, "s55")
    a("s_mul_i32 s53, s42, 320")
    a("s_movk_i32 s54, 3840")
    a("s_mul_i32 s57, s7, 160")
    a("s_add_u32 s57, s57, 1280")
    for j in range(5):
        w_npi(j)
        a(f"v_lshlrev_b32 v{t+3}, 1, v{t+3}")
        a(f"v_xor_b32 v{t+2}, v{t+2}, v{t+3}")
        a(f"v_mul_u32_u24 v{t+3}, 52, v{t+2}")
        a(f"v_lshrrev_b32 v{t+3}, 8, v{t+3}")
        a(f"v_mul_u32_u24 v{t+4}, 5, v{t+3}")
        a(f"v_sub_u32 v{t+2}, v{t+2}, v{t+4}")
        a(f"v_lshlrev_b32 v{t+2}, 4, v{t+2}")
        a(f"v_lshrrev_b32 v{t+4}, 1, v{t+3}")
        a(f"v_mad_u32_u24 v{t+2}, v{t+4}, 64, v{t+2}")
        a(f"v_lshl_add_u32 v{t+2}, v{t+4}, 4, v{t+2}")
        a(f"v_and_b32 v{t+3}, 1, v{t+3}")
        a(f"v_mul_u32_u24 v{t+3}, 1280, v{t+3}")
        a(f"v_add_u32 v{t+2}, v{t+2}, v{t+3}")
        a(f"v_mul_lo_u32 v{t+1}, v{t+1}, s54")
        a(f"v_add3_u32 v{V_DMA+8+j}, v{t+1}, v{t+2}, s57")
    qkv_srds()
    TK = dict(name='kv', NT=8, NF=5, nfb=2, ksb=10240, hhb=1280, wstep=64*3840, tokrows=True, nside=0,
              fread=lambda f: (V_FB + (f % 2), 64 * (f // 2)), dma=dma_qkv,
              order=[((tt*5+f)*4, tt, f) for tt in range(8) for f in range(5)])
    issue_stage(a, TK, 0)
    stamp(a, 1)
    a("s_lshr_b32 s56, s42, 1")
    a("s_and_b32 s57, s42, 1")
    a("s_lshl_b32 s53, s56, 14")
    tok_bases(a, "s53")
    lane_grc(a)
    a(f"v_and_b32 v{t}, 1, v{t+8}")
    a(f"v_lshlrev_b32 v{t}, 1, v{t}")
    a(f"v_lshrrev_b32 v{t+1}, 1, v{t+10}")
    a("s_mul_i32 s53, s57, 10")
    a(f"v_add_u32 v{t+1}, s53, v{t+1}")
    a(f"v_mul_u32_u24 v{t+2}, 320, v{t+11}")
    a(f"v_and_b32 v{t+3}, 1, v{t+10}")
    a(f"v_lshl_add_u32 v{t+2}, v{t+3}, 3, v{t+2}")
    a(f"v_add_u32 v{t+2}, 32768, v{t+2}")
    for p in range(2):
        a(f"v_add_u32 v{t+3}, {2*p}, v{t+1}")
        a(f"v_xor_b32 v{t+3}, v{t+3}, v{t}")
        a(f"v_lshl_add_u32 v{V_FB+p}, v{t+3}, 4, v{t+2}")
    zero_acc(a, 160)
    issue_stage(a, TK, 1)
    pairs = [(2,0),(3,0),(2,1),(3,1),(4,1),(3,2),(4,2),(None,0),(None,1),(None,2)]
    a(f"v_and_b32 v{t}, 15, v{V_L}")
    a(f"v_mov_b32 v{t+7}, {OOB}")
    for n, (Tv, Tk) in enumerate(pairs):
        a(f"v_add_u32 v{t+1}, {16*Tk}, v{t}")
        a(f"v_mul_u32_u24 v{t+2}, 96, v{t+1}")
        if Tv is not None:
            a(f"v_cmp_lt_u32 vcc, 19, v{t+1}")
            a(f"v_cndmask_b32 v{t+3}, 0, 5, vcc")
            a(f"v_add_u32 v{t+4}, {(4*Tv-10) & 0xffffffff}, v{t+8}")
            a(f"v_sub_u32 v{t+4}, v{t+4}, v{t+3}")
            a(f"v_lshl_add_u32 v{t+2}, v{t+4}, 4, v{t+2}")
            a(f"v_cmp_gt_u32 vcc, 5, v{t+4}")
        else:
            a(f"v_add_u32 v{t+2}, 80, v{t+2}")
            a(f"v_cmp_eq_u32 vcc, 0, v{t+8}")
        a(f"v_cndmask_b32 v{t+2}, v{t+7}, v{t+2}, vcc")
        a(f"v_cmp_gt_u32 vcc, 40, v{t+1}")
        a(f"v_cndmask_b32 v{V_EA+n}, v{t+7}, v{t+2}, vcc")
    first_reads(a, TK)
    mainloop(a, TK)
    stamp(a, 3)
    a(f"s_mov_b32 s70, {LOG2E}")
    a(f"s_mov_b32 s71, {LOG2E}")
    a(f"s_mov_b32 s72, {ONE_EPS}")
    a(f"s_mov_b32 s73, {ONE_EPS}")
    a(f"s_mov_b32 s74, {EPS}")
    a(f"s_mov_b32 s75, {EPS}")
    a("s_lshl_b32 s53, s6, 1")
    a("s_add_u32 s53, s53, s56")
    a("s_lshl_b32 s53, s53, 5")
    a("s_lshl_b32 s54, s7, 2")
    a("s_add_u32 s53, s53, s54")
    a("s_lshl_b32 s54, s57, 1")
    a("s_add_u32 s53, s53, s54")
    a("s_mul_i32 s53, s53, 1920")
    a(f"s_add_u32 s53, s53, {KVP}")
    a(f"v_and_b32 v{t}, 15, v{V_L}")
    a(f"v_cmp_gt_u32 s[76:77], 8, v{t}")
    a(f"v_cmp_eq_u32 vcc, 0, v{t}")
    a(f"v_mov_b32 v{t+1}, 0x3f803f80")
    for d in range(4):
        a(f"v_cndmask_b32 v{t+32+d}, 0, v{t+1}, vcc")
    ONES = t + 32
    KD = 120
    FR = t + 36
    for u in range(4):
        for half in range(2):
            tt = 2*u + half
            R0 = (tt*5)*4
            phi8(a, list(range(R0, R0+8)), t)
            R2 = (tt*5+2)*4
            for i in range(0, 4, 2):
                a(f"v_pk_mul_f32 {vr(t+8+i,2)}, {vr(R2+i,2)}, s[70:71]")
            for i in range(4):
                a(f"v_exp_f32 v{t+8+i}, v{t+8+i} clamp")
            for i in range(0, 4, 2):
                a(f"v_pk_add_f32 {vr(t+12+i,2)}, {vr(R2+i,2)}, s[72:73]")
            for i in range(0, 4, 2):
                a(f"v_pk_add_f32 {vr(t+8+i,2)}, {vr(t+8+i,2)}, s[74:75]")
            for i in range(4):
                a(f"v_max_f32 v{t+8+i}, v{t+8+i}, v{t+12+i}")
            for i in range(4):
                a(f"v_cndmask_b32 v{R2+i}, v{R2+i}, v{t+8+i}, s[76:77]")
            for f in range(5):
                R = (tt*5+f)*4
                for d in range(2):
                    a(f"v_cvt_pk_bf16_f32 v{FR+4*f+2*half+d}, v{R+2*d}, v{R+2*d+1}")
        for n, (Tv, Tk) in enumerate(pairs):
            A = vr(FR+4*Tv) if Tv is not None else vr(ONES)
            C = ar(KD+4*n) if u else "0"
            a(f"v_mfma_f32_16x16x32_bf16 {ar(KD+4*n)}, {A}, {vr(FR+4*Tk)}, {C}")
    for n in range(10):
        a(f"buffer_store_dwordx4 {ar(KD+4*n)}, v{V_EA+n}, s[20:23], s53 offen")
    stamp(a, 4)
    stamp(a, 5)
    stamp_flush(a, 6, STAMP)
    a.label("L_k1_end")
    a("s_endpgm")
    return a

def gen_k2():
    a = Asm()
    ACC = 0; PQ = 80
    VL = 160; VL16 = 161; VG = 164; VDEN = 168; T = 200
    VWA = 192
    VMS = 196
    D = 3
    SC = " sc1"
    def abuf(slot): return slot * 36
    AMZ = 108
    stamp(a, 0)
    a("s_load_dwordx2 s[24:25], s[0:1], 64")
    a("s_load_dwordx2 s[40:41], s[0:1], 80")
    a("s_cmp_ge_u32 s2, 256")
    a("s_cbranch_scc1 L_k2_end")
    a(f"v_and_b32 v{VL}, 63, v0")
    a(f"v_lshrrev_b32 v{T}, 6, v0")
    a(f"v_lshlrev_b32 v{VL16}, 4, v{VL}")
    a(f"v_readfirstlane_b32 s42, v{T}")
    a("s_bfe_u32 s3, s2, 0x20001")
    a("s_lshr_b32 s5, s2, 5")
    a("s_lshl_b32 s3, s3, 3")
    a("s_add_u32 s6, s3, s5")
    a("s_and_b32 s3, s2, 1")
    a("s_lshl_b32 s3, s3, 2")
    a("s_bfe_u32 s5, s2, 0x20003")
    a("s_add_u32 s7, s3, s5")
    a("s_lshl_b32 s3, s42, 7")
    a("s_add_u32 s3, s3, s6")
    a("s_mul_i32 s3, s3, 1920")
    a(f"s_add_u32 s50, s3, {KVP}")
    a(f"v_mov_b32 v{T+7}, {OOB}")
    a(f"v_cmp_gt_u32 vcc, 56, v{VL}")
    a(f"v_cndmask_b32 v{T+3}, v{T+7}, v{VL16}, vcc")
    a("s_lshl_b32 s3, s6, 3")
    a("s_add_u32 s3, s3, s7")
    a("s_mul_i32 s3, s3, 5120")
    a("s_lshr_b32 s4, s42, 1")
    a("s_mul_i32 s53, s4, 3072")
    a("s_add_u32 s3, s3, s53")
    a(f"s_add_u32 s51, s3, {WOF}")
    a("s_waitcnt lgkmcnt(0)")
    srd(a, 20, 40, 41, WSSZ)
    for p in range(4):
        a(f"buffer_load_dwordx4 {vr(8*p)}, v{VL16}, s[20:23], s50 offen")
        a(f"buffer_load_dwordx4 {vr(8*p+4)}, v{T+3}, s[20:23], s50 offen offset:1024")
        if p < 3: a(f"s_add_u32 s50, s50, {32*1920}")
    for t in range(3):
        a(f"buffer_load_dwordx4 {vr(128+4*t)}, v{VL16}, s[20:23], s51 offen offset:{t*1024}")
    a("s_lshl_b32 s3, s6, 2")
    a("s_mul_i32 s4, s42, 12")
    for tau in range(4):
        a(f"s_xor_b32 s5, s42, {tau}")
        a("s_add_u32 s5, s5, s3")
        a("s_mul_i32 s5, s5, 68")
        a("s_add_u32 s5, s5, s4")
        a(f"s_lshl_b32 s{44+tau}, s5, 10")
    a("s_mul_i32 s5, s7, 48")
    a("s_add_u32 s5, s5, s4")
    a("s_mul_i32 s5, s5, 5120")
    a(f"s_add_u32 s48, s5, {WDF}")
    a("s_add_u32 s49, s48, 4096")
    def loads_b(slot):
        b = abuf(slot)
        r = []
        for tau in range(4):
            r.append(f"buffer_load_dwordx4 {ar(b+4*tau)}, v{VL16}, s[20:23], s{44+tau} offen")
        for t in range(5):
            if t < 4:
                r.append(f"buffer_load_dwordx4 {ar(b+16+4*t)}, v{VL16}, s[20:23], s48 offen offset:{t*1024}")
            else:
                r.append(f"buffer_load_dwordx4 {ar(b+16+4*t)}, v{VL16}, s[20:23], s49 offen")
        adv = [f"s_addk_i32 s{44+tau}, 0x400" for tau in range(4)] + ["s_addk_i32 s48, 5120", "s_addk_i32 s49, 5120"]
        return r, adv
    for sl in range(2):
        r, adv = loads_b(sl)
        for x in r + adv: a(x)
    stamp(a, 1)
    srd(a, 8, 24, 25, 2048*1280)
    a("s_lshr_b32 s50, s6, 3")
    a("s_bfe_u32 s51, s6, 0x20001")
    a("s_and_b32 s52, s6, 1")
    a("s_and_b32 s54, s42, 1")
    a(f"v_and_b32 v{T}, 15, v{VL}")
    a(f"v_lshrrev_b32 v{T+1}, 4, v{VL}")
    a("s_lshl_b32 s3, s42, 11")
    a(f"v_add_u32 v{T+8}, s3, v{VL16}")
    a("s_lshl_b32 s3, s54, 4")
    a(f"v_add_u32 v{T+2}, s3, v{T}")
    a(f"v_mul_u32_u24 v{T+9}, 96, v{T+2}")
    a(f"v_lshl_add_u32 v{T+9}, v{T+1}, 5, v{T+9}")
    a(f"v_cmp_gt_u32 vcc, 20, v{T+2}")
    a(f"v_cmp_gt_u32 s[76:77], 3, v{T+1}")
    a("s_and_b64 s[76:77], s[76:77], vcc")
    a(f"v_mov_b32 v{T+10}, 1920")
    a(f"v_cndmask_b32 v{T+9}, v{T+10}, v{T+9}, s[76:77]")
    a("s_lshl_b32 s3, s51, 2")
    a("s_add_u32 s3, s3, s52")
    a("s_add_u32 s3, s3, 32")
    a(f"v_cmp_eq_u32 vcc, s3, v{VL}")
    a(f"v_mov_b32 v{T+4}, 0x3f80")
    a(f"v_cndmask_b32 v{T+11}, 0, v{T+4}, vcc")
    a("s_lshl_b32 s3, s54, 2")
    a(f"v_add_u32 v{T+4}, s3, v{T+1}")
    a("s_mul_i32 s4, s52, 5")
    a(f"v_add_u32 v{T+5}, s4, v{T+4}")
    a(f"v_lshrrev_b32 v{T+6}, 1, v{T+5}")
    a(f"v_mul_u32_u24 v{T+6}, 6144, v{T+6}")
    a(f"v_xor_b32 v{T+5}, s51, v{T+5}")
    a(f"v_and_b32 v{T+5}, 1, v{T+5}")
    a(f"v_lshl_add_u32 v{T+6}, v{T+5}, 3, v{T+6}")
    a(f"v_lshl_add_u32 v{T+6}, v{T}, 4, v{T+6}")
    a(f"v_cmp_gt_u32 vcc, 5, v{T+4}")
    a(f"v_cndmask_b32 v{VMS}, v{T+7}, v{T+6}, vcc")
    a("s_mul_i32 s3, s7, 20")
    a("s_mul_i32 s4, s50, 5")
    a("s_add_u32 s3, s3, s4")
    a("s_mul_i32 s3, s3, 6144")
    a("s_lshl_b32 s4, s51, 8")
    a("s_add_u32 s3, s3, s4")
    a("s_add_u32 s3, s3, s53")
    a(f"s_add_u32 s55, s3, {MZ}")
    a("s_lshl_b32 s3, s7, 8")
    a(f"s_add_u32 s56, s3, {CNT}")
    a(f"s_waitcnt vmcnt({3 + 18})")
    for i in range(0, 8, 2):
        a(f"v_pk_add_f32 {vr(i,2)}, {vr(i,2)}, {vr(8+i,2)}")
        a(f"v_pk_add_f32 {vr(16+i,2)}, {vr(16+i,2)}, {vr(24+i,2)}")
    for i in range(0, 8, 2):
        a(f"v_pk_add_f32 {vr(i,2)}, {vr(i,2)}, {vr(16+i,2)}")
    a(f"ds_write_b128 v{T+8}, {vr(0)}")
    a(f"ds_write_b128 v{T+8}, {vr(4)} offset:1024")
    a("s_waitcnt lgkmcnt(0)")
    a("s_barrier")
    for w in range(4):
        a(f"ds_read_b128 {vr(8*w)}, v{T+9} offset:{w*2048}")
        a(f"ds_read_b128 {vr(8*w+4)}, v{T+9} offset:{w*2048+16}")
    a("s_waitcnt lgkmcnt(0)")
    for i in range(0, 8, 2):
        a(f"v_pk_add_f32 {vr(i,2)}, {vr(i,2)}, {vr(8+i,2)}")
        a(f"v_pk_add_f32 {vr(16+i,2)}, {vr(16+i,2)}, {vr(24+i,2)}")
    for i in range(0, 8, 2):
        a(f"v_pk_add_f32 {vr(i,2)}, {vr(i,2)}, {vr(16+i,2)}")
    for d in range(4):
        a(f"v_cvt_pk_bf16_f32 v{8+d}, v{2*d}, v{2*d+1}")
    a(f"s_waitcnt vmcnt(18)")
    a("s_cmp_lt_u32 s42, 2")
    a("s_cbranch_scc1 L_k2_noones")
    a("v_mov_b32 v136, 0")
    a("v_mov_b32 v137, 0")
    a(f"v_mov_b32 v138, v{T+11}")
    a("v_mov_b32 v139, 0")
    a("s_nop 1")
    a.label("L_k2_noones")
    for t in range(3):
        a(f"v_mfma_f32_16x16x32_bf16 {vr(16+4*t)}, {vr(8)}, {vr(128+4*t)}, 0")
    for t in range(3):
        a(f"v_cvt_pk_bf16_f32 v{48+2*t}, v{16+4*t}, v{17+4*t}")
        a(f"v_cvt_pk_bf16_f32 v{49+2*t}, v{18+4*t}, v{19+4*t}")
        a(f"buffer_store_dwordx2 {vr(48+2*t,2)}, v{VMS}, s[20:23], s55 offen offset:{t*1024}{SC}")
    r, adv = loads_b(2)
    for x in r + adv: a(x)
    for i in range(0, 80, 2): a(f"v_mov_b64 v[{ACC+i}:{ACC+i+1}], 0")
    stamp(a, 2)
    def mf_b(slot):
        b = abuf(slot)
        return [f"v_mfma_f32_16x16x32_bf16 {vr(ACC+(tau*5+t)*4)}, {ar(b+16+4*t)}, {ar(b+4*tau)}, {vr(ACC+(tau*5+t)*4)}"
                for tau in range(4) for t in range(5)]
    a("s_mov_b32 s43, 0")
    a.label("L_k2_b")
    for sl in range(D):
        a(f"s_waitcnt vmcnt({9*(D-1)})")
        if sl == 1:
            a("s_cmp_lg_u32 s43, 0")
            a("s_cbranch_scc1 L_k2_nosig")
            a(f"v_mov_b32 v{T+4}, 1")
            a("s_mov_b64 exec, 1")
            a(f"buffer_atomic_add v{T+4}, off, s[20:23], s56 sc1")
            a("s_mov_b64 exec, -1")
            a.label("L_k2_nosig")
        for x in mf_b(sl): a(x)
        r, adv = loads_b(sl)
        for x in r + adv: a(x)
    a("s_add_u32 s43, s43, 1")
    a("s_cmp_lt_u32 s43, 2")
    a("s_cbranch_scc1 L_k2_b")
    a("s_mul_i32 s3, s42, -7168")
    a(f"s_add_u32 s3, s3, {39*1024}")
    for tau in range(4):
        a(f"s_add_u32 s{80+tau}, s{44+tau}, s3")
        a(f"s_add_u32 s{84+tau}, s{80+tau}, 4096")
    a("s_mul_i32 s3, s7, 20")
    a("s_mul_i32 s4, s42, 5")
    a("s_add_u32 s3, s3, s4")
    a("s_mul_i32 s3, s3, 6144")
    a(f"s_add_u32 s88, s3, {MZ}")
    a("s_add_u32 s89, s88, 4096")
    a(f"buffer_load_dword v{T}, off, s[20:23], s56{SC}")
    a(f"v_and_b32 v{T+8}, 15, v{VL}")
    a(f"v_lshlrev_b32 v{T+8}, 2, v{T+8}")
    a("s_lshl_b32 s3, s6, 2")
    for tau in range(4):
        a(f"s_xor_b32 s5, s42, {tau}")
        a("s_add_u32 s5, s5, s3")
        a("s_lshl_b32 s5, s5, 6")
        a(f"s_add_u32 s5, s5, {GOFF}")
        a(f"buffer_load_dword v{VG+tau}, v{T+8}, s[20:23], s5 offen")
    for tau in range(4):
        for i in range(5):
            if i < 4: a(f"buffer_load_dwordx4 {vr(PQ+(tau*5+i)*4)}, v{VL16}, s[20:23], s{80+tau} offen offset:{i*1024}")
            else: a(f"buffer_load_dwordx4 {vr(PQ+(tau*5+i)*4)}, v{VL16}, s[20:23], s{84+tau} offen")
    a(f"s_waitcnt vmcnt({18+25})")
    for x in mf_b(0): a(x)
    r, adv = loads_b(0)
    for x in r + adv: a(x)
    a(f"s_waitcnt vmcnt({9+25+9})")
    for x in mf_b(1): a(x)
    a(f"s_waitcnt vmcnt({24+9})")
    stamp(a, 3)
    a("s_mov_b32 s57, 0")
    a.label("L_k2_poll")
    a(f"v_readfirstlane_b32 s3, v{T}")
    a("s_cmp_ge_u32 s3, 128")
    a("s_cbranch_scc1 L_k2_ready")
    a("s_add_u32 s57, s57, 1")
    a("s_cmp_gt_u32 s57, 0x40000")
    a("s_cbranch_scc1 L_k2_ready")
    a("s_sleep 2")
    a(f"buffer_load_dword v{T}, off, s[20:23], s56{SC}")
    a("s_waitcnt vmcnt(0)")
    a("s_branch L_k2_poll")
    a.label("L_k2_ready")
    stamp(a, 4)
    for i in range(5):
        a(f"buffer_load_dwordx4 {ar(AMZ+(i*6+5)*4)}, v{VL16}, s[20:23], s89 offen offset:1024{SC}")
        a("s_addk_i32 s89, 6144")
    a(f"s_sub_u32 s89, s89, {5*6144}")
    r, adv = loads_b(1)
    for x in r + adv: a(x)
    for x in mf_b(2): a(x)
    r, adv = loads_b(2)
    for x in r: a(x)
    a("s_waitcnt vmcnt(18)")
    def mloads(i):
        for t in range(5):
            if t < 4: a(f"buffer_load_dwordx4 {ar(AMZ+(i*6+t)*4)}, v{VL16}, s[20:23], s88 offen offset:{t*1024}{SC}")
            else: a(f"buffer_load_dwordx4 {ar(AMZ+(i*6+t)*4)}, v{VL16}, s[20:23], s89 offen{SC}")
        a("s_addk_i32 s88, 6144")
        a("s_addk_i32 s89, 6144")
    for i in range(5): mloads(i)
    for i in range(5):
        for tau in range(4):
            C = vr(VDEN+4*tau) if i else "0"
            a(f"v_mfma_f32_16x16x32_bf16 {vr(VDEN+4*tau)}, {ar(AMZ+(i*6+5)*4)}, {vr(PQ+(tau*5+i)*4)}, {C}")
    for x in mf_b(0): a(x)
    a(f"v_bfe_u32 v{T+8}, v{VL}, 4, 1")
    a(f"v_cmp_eq_u32 s[76:77], 1, v{T+8}")
    a(f"s_mov_b32 s78, 0xffff0000")
    for tau in range(4):
        for e in range(2):
            a(f"v_add_f32 v{VDEN+4*tau+e}, {EPS}, v{VDEN+4*tau+e}")
    for tau in range(4):
        for e in range(2):
            a(f"v_rcp_f32 v{VDEN+4*tau+e}, v{VDEN+4*tau+e}")
    for tau in range(4):
        for e in range(2):
            a(f"v_mul_f32 v{VDEN+4*tau+e}, v{VDEN+4*tau+e}, v{VG+tau}")
    for tau in range(4):
        a(f"v_cndmask_b32 v{VDEN+4*tau+2}, v{VDEN+4*tau}, v{VDEN+4*tau+1}, s[76:77]")
        a(f"v_cndmask_b32 v{VDEN+4*tau+3}, v{VDEN+4*tau+1}, v{VDEN+4*tau}, s[76:77]")
    for tau in range(4):
        a(f"v_sub_f32 v{VG+tau}, 1.0, v{VG+tau}")
    def scale(i):
        for tau in range(4):
            F = PQ + (tau*5+i)*4
            tm = T + 8*(tau % 2) + 16
            for d in range(4):
                a(f"v_lshlrev_b32 v{tm+2*d}, 16, v{F+d}")
                a(f"v_and_b32 v{tm+2*d+1}, s78, v{F+d}")
            for d in range(4):
                if i < 2: rr = VDEN+4*tau
                elif i > 2: rr = VDEN+4*tau+1
                else: rr = VDEN+4*tau+2+(d//2)
                a(f"v_mul_f32 v{tm+2*d}, v{tm+2*d}, v{rr}")
                a(f"v_mul_f32 v{tm+2*d+1}, v{tm+2*d+1}, v{rr}")
            for d in range(4):
                a(f"v_cvt_pk_bf16_f32 v{F+d}, v{tm+2*d}, v{tm+2*d+1}")
    scale(0); scale(1)
    a("s_waitcnt vmcnt(34)")
    for x in mf_b(1): a(x)
    scale(2); scale(3)
    a("s_waitcnt vmcnt(25)")
    for x in mf_b(2): a(x)
    scale(4)
    for tau in range(4):
        for i in range(20):
            a(f"v_mul_f32 v{ACC+tau*20+i}, v{ACC+tau*20+i}, v{VG+tau}")
    for i in range(5):
        a(f"s_waitcnt vmcnt({20-5*i})")
        for tau in range(4):
            for t in range(5):
                A = ACC+(tau*5+t)*4
                a(f"v_mfma_f32_16x16x32_bf16 {vr(A)}, {ar(AMZ+(i*6+t)*4)}, {vr(PQ+(tau*5+i)*4)}, {vr(A)}")
    stamp(a, 5)
    RED = 8192
    for tau in range(1, 4):
        a(f"s_xor_b32 s3, s42, {tau}")
        a("s_mul_i32 s3, s3, 15360")
        a(f"s_add_u32 s3, s3, {(tau-1)*5120 + RED}")
        a(f"v_add_u32 v{VWA+tau}, s3, v{VL16}")
    a("s_mul_i32 s3, s42, 15360")
    a(f"s_add_u32 s3, s3, {RED}")
    a(f"v_add_u32 v{VWA}, s3, v{VL16}")
    for tau in range(1, 4):
        for t in range(5):
            a(f"ds_write_b128 v{VWA+tau}, {vr(ACC+(tau*5+t)*4)} offset:{t*1024}")
    a("s_waitcnt lgkmcnt(0)")
    a("s_barrier")
    for j in range(15):
        a(f"ds_read_b128 {vr(PQ+4*j)}, v{VWA} offset:{j*1024}")
    a("s_lshl_b32 s3, s6, 6")
    a("s_lshl_b32 s4, s42, 4")
    a("s_add_u32 s3, s3, s4")
    a("s_mul_i32 s3, s3, 1280")
    a("s_mul_i32 s4, s7, 160")
    a("s_add_u32 s3, s3, s4")
    a(f"v_and_b32 v{T}, 15, v{VL}")
    a(f"v_mul_u32_u24 v{T}, 1280, v{T}")
    a(f"v_lshrrev_b32 v{T+1}, 4, v{VL}")
    a(f"v_lshl_add_u32 v{T+2}, v{T+1}, 4, v{T}")
    a(f"v_lshl_add_u32 v{T+3}, v{T+1}, 3, v{T}")
    for src in range(3):
        a(f"s_waitcnt lgkmcnt({10-5*src})")
        for i in range(0, 20, 2):
            a(f"v_pk_add_f32 {vr(ACC+i,2)}, {vr(ACC+i,2)}, {vr(PQ+20*src+i,2)}")
    for i in range(10):
        a(f"v_cvt_pk_bf16_f32 v{T+8+i}, v{ACC+2*i}, v{ACC+2*i+1}")
    a(f"buffer_store_dwordx4 {vr(T+8)}, v{T+2}, s[8:11], s3 offen")
    a(f"buffer_store_dwordx4 {vr(T+12)}, v{T+2}, s[8:11], s3 offen offset:64")
    a(f"buffer_store_dwordx2 {vr(T+16,2)}, v{T+3}, s[8:11], s3 offen offset:128")
    stamp(a, 6)
    stamp_flush(a, 7, STAMP + 0x10000)
    a.label("L_k2_end")
    a("s_endpgm")
    return a

HDR = open('gated_mix__linear_attn_block__glu_gated_glu__prompt.s.ref').read().split('; Override launch')[0]

def finish(a):
    lines, n = hazard.pad(a.lines)
    bad = hazard.check_branches(lines)
    for b in bad: print("BRANCH HAZARD:", b, file=sys.stderr)
    print("hazard nops inserted:", n, file=sys.stderr)
    return "\n".join(lines) + "\n"

out = HDR
out += f"; @launch kernel=k1_kernel grid=(256,1,1) block=(256,1,1) lds={LDS1}\n"
out += f"; @launch kernel=k2_kernel grid=(256,1,1) block=(256,1,1) lds=69632\n"
out += '.amdgcn_target "amdgcn-amd-amdhsa--gfx950"\n'
out += kernel_begin("k1_kernel") + finish(gen_k1())
out += kernel_begin("k2_kernel") + finish(gen_k2()) + "CODE_END:\n"
out += kernel_desc("k1_kernel", 416, 256)
out += kernel_desc("k2_kernel", 488, 256)
open(sys.argv[1], "w").write(out)
```

```python
import sys
from asmlib import *
import hazard

NAME = "gated_mix__linear_attn_block__glu_gated_glu__prompt"
AF   = 0
WDF  = 0x900000
MZ   = 0xAE0000
WOF  = 0xBD0000
KVP  = 0xD10000
GOFF = 0xE00000
EPO  = 0xE02000
FWB  = 0xE04000
F1B  = 0xE08000
F2B  = 0xE18000
WSSZ = 0xE28000
STAMP = 0xF00000

STG = 53248
GWL = 3 * STG
LDS1 = 163840
OOB = 0x7FFF0000
LOG2E = 0x3FB8AA3B
NLOG2E = 0xBFB8AA3B
EPS = 0x358637BD
ONE_EPS = 0x3F800008
SC = " sc1"
SPIN = 0x20000

OPT = dict(stamp=0, nomfma=0, loopst=0, nofwload=0, sosleep=256, m32=0, dpos=0, rstep=2, map2=0, noside=0, se=0, hpre=4)
for x in sys.argv[2:]:
    k, v = x.split('=')
    OPT[k] = int(v)

def vr(b, n=4): return f"v[{b}:{b+n-1}]"
def ar(b, n=4): return f"a[{b}:{b+n-1}]"

def srd(a, d, lo, hi, nrec):
    a(f"s_mov_b32 s{d}, s{lo}")
    a(f"s_mov_b32 s{d+1}, s{hi}")
    a(f"s_mov_b32 s{d+2}, {nrec}")
    a(f"s_mov_b32 s{d+3}, 0x00020000")

SREG = [60, 62, 64, 66, 68, 24, 26, 28, 30, 32, 34, 36, 38, 12, 14, 16]
def stamp(a, idx):
    r = SREG[idx]
    if OPT['stamp'] == 1: a(f"s_memrealtime s[{r}:{r+1}]")
    elif OPT['stamp'] == 2: a(f"s_memtime s[{r}:{r+1}]")

def stamp_flush(a, n):
    if not OPT['stamp']: return
    a("s_waitcnt lgkmcnt(0) vmcnt(0)")
    a("s_lshl_b32 s58, s2, 2")
    a("s_add_u32 s58, s58, s42")
    a("s_lshl_b32 s58, s58, 6")
    a(f"s_add_u32 s58, s58, {STAMP}")
    a("s_mov_b32 s22, 0x10000000")
    a("v_mov_b32 v250, 0")
    for i in range(n):
        if OPT['loopst'] and 5 <= i < 12:
            a(f"v_readlane_b32 s57, v199, {i-5}")
            a(f"v_mov_b32 v251, s57")
        else:
            a(f"v_mov_b32 v251, s{SREG[i]}")
        a(f"buffer_store_dword v251, v250, s[20:23], s58 offen offset:{4*i}")
    a("s_waitcnt vmcnt(0)")

V_GL = 160; V_L = 164; V_DMA = 165; V_TB = 178; V_FB = 180; V_GW = 184
V_EA = 185
V_L16 = 195
V_TAG = 196
V_FW = 244
V_Z = 197
V_T = 200
A_SET = [0, 56]
A_GW = [112, 116]
A_WD = 120
A_WO = 240
WLDS = 30720
MSCR = 4 * WLDS
NSIDE_ST = 5

def interleave(a, mfmas, fillers):
    for i, m in enumerate(mfmas):
        if not OPT['nomfma']: a(m)
        for f in fillers.get(i, []): a(f)
    for p in sorted(k for k in fillers if k >= len(mfmas)):
        for f in fillers[p]: a(f)

def spin_until(a, name, load, check, tmp="s57", sleep=1):
    a(f"s_mov_b32 {tmp}, 0")
    a.label(f"L_{name}_poll")
    for x in check: a(x)
    a(f"s_cbranch_scc1 L_{name}_ok")
    a(f"s_add_u32 {tmp}, {tmp}, 1")
    a(f"s_cmp_gt_u32 {tmp}, {SPIN}")
    a(f"s_cbranch_scc1 L_{name}_ok")
    a(f"s_sleep {sleep}")
    for x in (load if isinstance(load, list) else [load]): a(x)
    a("s_waitcnt vmcnt(0)")
    a(f"s_branch L_{name}_poll")
    a.label(f"L_{name}_ok")

V_FWA = 198
FW_LOAD = f"buffer_load_dwordx4 {vr(V_FW)}, v{V_FWA}, s[20:23], 0 offen{SC}"
FW_CHECK = [f"v_cmp_eq_u32 vcc, s100, v{V_FW}", f"v_cmp_eq_u32 s[76:77], s100, v{V_FW+1}", "s_and_b64 vcc, vcc, s[76:77]",
            f"v_cmp_eq_u32 s[76:77], s100, v{V_FW+2}", "s_and_b64 vcc, vcc, s[76:77]",
            f"v_cmp_eq_u32 s[76:77], s100, v{V_FW+3}", "s_and_b64 vcc, vcc, s[76:77]", "s_cmp_eq_u64 vcc, -1"]
def flag_store(a, sreg):
    a("s_mov_b64 exec, 1")
    a(f"buffer_store_dword v{V_TAG}, off, s[20:23], {sreg}{SC}")
    a("s_mov_b64 exec, -1")
def epoch_load(a):
    a(f"s_mov_b32 s53, {EPO}")
    a("s_load_dword s100, s[40:41], s53")
def make_tag(a):
    a("s_mul_i32 s100, s100, 0x9E3779B1")
    a("s_add_u32 s100, s100, 0x7F4A7C15")
    a(f"v_mov_b32 v{V_TAG}, s100")
    a("s_and_b32 s93, s2, 31")
    a("s_lshl_b32 s93, s93, 8")
    a("s_lshr_b32 s53, s2, 5")
    a("s_lshl_b32 s53, s53, 2")
    a("s_add_u32 s93, s93, s53")
    a(f"s_add_u32 s93, s93, {FWB}")

def preload1():
    r = []
    for f in range(30):
        r.append(f"buffer_load_dwordx4 {ar(A_WD+4*f)}, v{V_L16}, s[20:23], s82 offen offset:{(f%4)*1024}{SC}")
        if f % 4 == 3: r.append("s_addk_i32 s82, 0x1000")
    r.append("s_addk_i32 s82, 0x800")
    for t in range(3):
        r.append(f"buffer_load_dwordx4 {ar(A_WO+4*t)}, v{V_L16}, s[20:23], s49 offen offset:{t*1024}{SC}")
    return r

def preload2():
    r = []
    for f in range(30):
        g = []
        if f % 4 == 0:
            if f == 0: g.append(f"s_mul_i32 m0, s42, {WLDS}")
            else: g.append("s_addk_i32 m0, 0x1000"); g.append("s_addk_i32 s82, 0x1000")
        g.append(f"buffer_load_dwordx4 v{V_L16}, s[20:23], s82 offen offset:{(f%4)*1024}{SC} lds")
        r.append(g)
    return r

def mainloop(a, T):
    NT, NF = T['NT'], T['NF']
    name = T['name']
    def reads(ks, st):
        base = A_SET[st]
        tok = [f"ds_read_b128 {ar(base+4*t)}, v{V_TB+ks} offset:{t*2048}" for t in range(NT)]
        fea = []
        for f in range(NF):
            vb, imm = T['fread'](f)
            for hh in range(2):
                fea.append(f"ds_read_b64_tr_b16 {ar(base+4*NT+4*f+2*hh, 2)}, v{vb} offset:{imm + ks*T['ksb'] + hh*T['hhb']}")
        r = tok[:1] + fea[:4] + tok[1:2] + fea[4:8] + tok[2:] + fea[8:]
        if T.get('gate'):
            r.append(f"ds_read_b128 {ar(A_GW[st])}, v{V_GW} offset:{ks*64}")
        return r
    def mfmas(st):
        base = A_SET[st]
        m = []
        for (acc, t, f) in T['order']:
            x = ar(base + 4*t); wf = ar(base + 4*NT + 4*f)
            if T['tokrows']: m.append(f"v_mfma_f32_16x16x32_bf16 {vr(acc)}, {x}, {wf}, {vr(acc)}")
            else: m.append(f"v_mfma_f32_16x16x32_bf16 {vr(acc)}, {wf}, {x}, {vr(acc)}")
        if T.get('gate'):
            m.append(f"v_mfma_f32_16x16x32_bf16 {vr(V_GL)}, {ar(A_GW[st])}, {ar(base)}, {vr(V_GL)}")
        return m
    if OPT['m32']:
        def mfmas(st):
            base = A_SET[st]
            m = []
            for i in range(20):
                acc = (i % 10) * 16
                m.append(f"v_mfma_f32_32x32x16_bf16 {vr(acc,16)}, {ar(base+4*(i%5))}, {ar(base+20+4*(i%8))}, {vr(acc,16)}")
                m.append("; pad")
            return m
    addr_regs = [V_TB, V_TB+1] + [V_FB+i for i in range(T['nfb'])]
    seq = T['dma']()
    H1 = 7
    def top(delta):
        a("s_barrier")
        for r in addr_regs: a(f"v_add_u32 v{r}, {delta}, v{r}")
        if T.get('gate'): a(f"v_add_u32 v{V_GW}, 128, v{V_GW}")
    def rfill(ks, st):
        fl = {}
        rr = reads(ks, st)
        for i, r in enumerate(rr):
            p = i if OPT['rstep'] == 1 else (i * 32) // len(rr)
            fl.setdefault(p, []).append(r)
        return fl
    a.label(f"L_{name}_A")
    a("s_waitcnt vmcnt(13) lgkmcnt(0)")
    top("s47")
    if T.get('side'):
        a(f"s_cmp_lg_u32 s43, {OPT['se']+1}")
        a(f"s_cbranch_scc1 L_{name}_notr")
        side_writes(a)
        side_reads(a)
        a.label(f"L_{name}_notr")
    if OPT["loopst"]: a("s_memrealtime s[38:39]" if OPT["stamp"] == 1 else "s_memtime s[38:39]")
    a("s_cmp_lg_u32 s43, s92")
    a(f"s_cbranch_scc1 L_{name}_nofw")
    a(FW_LOAD)
    a.label(f"L_{name}_nofw")
    fl = rfill(0, 0)
    for j, (m0, ld) in enumerate(seq[:H1]):
        p = 6*j+1 if OPT['dpos'] == 0 else 25 + 2*j
        fl.setdefault(p, []).append(m0)
        fl.setdefault(p+1, []).append(ld)
    interleave(a, mfmas(1), fl)
    a.label(f"L_{name}_mid")
    a("s_waitcnt lgkmcnt(0)")
    if OPT['loopst']:
        a(f"v_cmp_eq_u32 vcc, s43, v{V_L}")
        a("v_mov_b32 v254, s38")
        a("v_cndmask_b32 v199, v199, v254, vcc")
    fl = rfill(1, 1)
    for j, (m0, ld) in enumerate(seq[H1:]):
        p = 6*j+2 if OPT['dpos'] == 0 else 21 + 2*j
        fl.setdefault(p, []).append(m0)
        fl.setdefault(p+1, []).append(ld)
    fl.setdefault(34, []).extend(["s_add_u32 s44, s44, 128", f"s_add_u32 s45, s45, {T['wstep']}"])
    fl.setdefault(35, []).extend(["s_add_u32 s46, s46, s47", "s_add_u32 s43, s43, 1"])
    fl.setdefault(36, []).extend([f"s_cmp_eq_u32 s46, {2*STG}", f"s_cselect_b32 s47, {-2*STG & 0xffffffff}, s59"])
    interleave(a, mfmas(0), fl)
    if T.get('side'):
        a(f"s_cmp_lg_u32 s43, {OPT['se']}")
        a(f"s_cbranch_scc1 L_{name}_nold")
        if not OPT['noside'] & 1: side_loads(a)
        a.label(f"L_{name}_nold")
        a(f"s_cmp_lg_u32 s43, {OPT['se']+2}")
        a(f"s_cbranch_scc1 L_{name}_nost")
        if not OPT['noside'] & 2: side_stores(a)
        a.label(f"L_{name}_nost")
    a("s_cmp_lg_u32 s43, s91")
    a(f"s_cbranch_scc1 L_{name}_nosig")
    flag_store(a, "s93")
    a.label(f"L_{name}_nosig")
    a("s_cmp_lt_u32 s43, 7")
    a(f"s_cbranch_scc1 L_{name}_A")
    stamp(a, 3)
    a("s_waitcnt vmcnt(13) lgkmcnt(0)")
    a("s_cmp_lg_u32 s42, 0")
    a(f"s_cbranch_scc1 L_{name}fw_ok")
    spin_until(a, name + "fwx", FW_LOAD, FW_CHECK, sleep=8)
    if name == 'kv':
        a("s_cmp_lg_u32 s2, 0")
        a(f"s_cbranch_scc1 L_{name}fw_ok")
        a(f"s_mov_b32 s53, {EPO}")
        flag_store(a, "s53")
    a.label(f"L_{name}fw_ok")
    pl = preload1()
    nld = lambda l: sum(1 for x in l if x.startswith("buffer"))
    q = [pl[0:11], pl[11:21], pl[21:31], pl[31:]]
    def addpl(fl, l, start=1, step=3):
        p = start
        for x in l:
            fl.setdefault(p, []).append(x)
            if x.startswith("buffer"): p += step
    top(STG)
    fl = rfill(0, 0); addpl(fl, q[0]); interleave(a, mfmas(1), fl)
    a("s_waitcnt lgkmcnt(0)")
    fl = rfill(1, 1); addpl(fl, q[1]); interleave(a, mfmas(0), fl)
    a(f"s_waitcnt vmcnt({nld(q[0]) + nld(q[1])}) lgkmcnt(0)")
    top(-2*STG & 0xffffffff)
    fl = rfill(0, 0); addpl(fl, q[2]); interleave(a, mfmas(1), fl)
    a("s_waitcnt lgkmcnt(0)")
    fl = rfill(1, 1); addpl(fl, q[3]); interleave(a, mfmas(0), fl)
    a("s_waitcnt lgkmcnt(0)")
    a("s_barrier")
    fl = {}
    g2 = preload2()
    for j, g in enumerate(g2[:T['npl2']]):
        p = 3*j
        for x in g[:-1]: fl.setdefault(p, []).append(x)
        fl.setdefault(p+1, []).append(g[-1])
    interleave(a, mfmas(1), fl)
    stamp(a, 4)
    return g2[T['npl2']:]

def issue_stage(a, T, st, lo=0, hi=13, adv=True):
    a(f"s_mov_b32 s46, {st*STG}")
    for (m0, ld) in T['dma']()[lo:hi]:
        a(m0); a("s_nop 0"); a(ld)
    if adv:
        a("s_add_u32 s44, s44, 128")
        a(f"s_add_u32 s45, s45, {T['wstep']}")

def first_reads(a, T):
    a("s_waitcnt vmcnt(13)")
    a("s_barrier")
    stamp(a, 2)
    NT, NF = T['NT'], T['NF']
    base = A_SET[0]
    for t in range(NT):
        a(f"ds_read_b128 {ar(base+4*t)}, v{V_TB} offset:{t*2048}")
    for f in range(NF):
        vb, imm = T['fread'](f)
        for hh in range(2):
            a(f"ds_read_b64_tr_b16 {ar(base+4*NT+4*f+2*hh, 2)}, v{vb} offset:{imm + hh*T['hhb']}")
    if T.get('gate'):
        a(f"ds_read_b128 {ar(A_GW[0])}, v{V_GW}")
    issue_stage(a, T, 2, 0, 7, adv=False)
    a("s_cmp_eq_u32 s42, 0")
    a(f"s_cselect_b32 s91, {OPT['se']+4}, 99")
    a("s_cselect_b32 s92, 6, 99")
    a("s_waitcnt lgkmcnt(0)")
    make_tag(a)
    a("s_mov_b32 s43, -1")
    a(f"s_mov_b32 s59, {STG}")
    a(f"s_mov_b32 s47, {-2*STG & 0xffffffff}")
    a(f"s_branch L_{T['name']}_mid")

def zero_acc(a, n):
    for i in range(0, n, 2): a(f"v_mov_b64 v[{i}:{i+1}], 0")

def x_voffsets(a, dst, nblk, srow0, xorreg=None):
    t = V_T
    a(f"s_mul_i32 s53, s42, {nblk*8}")
    a(f"v_lshrrev_b32 v{t}, 3, v{V_L}")
    a(f"v_add_u32 v{t}, s53, v{t}")
    a(f"v_and_b32 v{t+1}, 7, v{V_L}")
    a(f"s_movk_i32 s54, 1280")
    for j in range(nblk):
        a(f"v_add_u32 v{t+2}, {8*j}, v{t}")
        a(f"v_bfe_u32 v{t+3}, v{t+2}, 1, 3")
        a(f"v_xor_b32 v{t+3}, v{t+3}, v{t+1}")
        if xorreg is not None: a(f"v_xor_b32 v{t+2}, {xorreg}, v{t+2}")
        a(f"v_add_u32 v{t+2}, {srow0}, v{t+2}")
        a(f"v_mul_lo_u32 v{t+2}, v{t+2}, s54")
        a(f"v_lshl_add_u32 v{dst+j}, v{t+3}, 4, v{t+2}")

def tok_bases(a, stokoff):
    t = V_T
    a(f"v_and_b32 v{t}, 15, v{V_L}")
    a(f"v_lshrrev_b32 v{t+1}, 4, v{V_L}")
    a(f"v_lshrrev_b32 v{t+2}, 1, v{t}")
    a(f"v_xor_b32 v{t+2}, v{t+2}, v{t+1}")
    a(f"v_lshlrev_b32 v{t+3}, 7, v{t}")
    a(f"v_add_u32 v{t+3}, {stokoff}, v{t+3}")
    a(f"v_lshl_add_u32 v{V_TB}, v{t+2}, 4, v{t+3}")
    a(f"v_xor_b32 v{V_TB+1}, 64, v{V_TB}")

def lane_grc(a):
    t = V_T
    a(f"v_lshrrev_b32 v{t+8}, 4, v{V_L}")
    a(f"v_bfe_u32 v{t+9}, v{V_L}, 2, 2")
    a(f"v_and_b32 v{t+10}, 3, v{V_L}")
    a(f"v_lshl_add_u32 v{t+11}, v{t+8}, 3, v{t+9}")

def p2_params(a):
    if OPT['map2'] == 0:
        a("s_bfe_u32 s53, s2, 0x20001")
        a("s_lshr_b32 s54, s2, 5")
        a("s_lshl_b32 s53, s53, 3")
        a("s_add_u32 s80, s53, s54")
        a("s_and_b32 s53, s2, 1")
        a("s_lshl_b32 s53, s53, 2")
        a("s_bfe_u32 s54, s2, 0x20003")
        a("s_add_u32 s81, s53, s54")
    else:
        a("s_and_b32 s53, s2, 7")
        a("s_lshl_b32 s53, s53, 2")
        a("s_lshr_b32 s54, s2, 6")
        a("s_add_u32 s80, s53, s54")
        a("s_bfe_u32 s81, s2, 0x30003")
    a("s_mul_i32 s53, s81, 48")
    a("s_mul_i32 s54, s42, 12")
    a("s_add_u32 s53, s53, s54")
    a("s_mul_i32 s53, s53, 5120")
    a(f"s_add_u32 s82, s53, {WDF}")
    a("s_lshl_b32 s53, s80, 3")
    a("s_add_u32 s53, s53, s81")
    a("s_mul_i32 s53, s53, 5120")
    a("s_lshr_b32 s54, s42, 1")
    a("s_mul_i32 s54, s54, 3072")
    a("s_add_u32 s53, s53, s54")
    a(f"s_add_u32 s49, s53, {WOF}")

SIDE_LDS = ((OPT['se']+1) % 3) * STG
def side_setup(a):
    t = V_T
    a(f"s_mov_b32 s86, {640*1280}")
    a("s_cmp_lt_u32 s48, 96")
    a("s_cselect_b32 s84, s36, s28")
    a("s_cselect_b32 s85, s37, s29")
    a(f"s_cselect_b32 s86, {1536*1280}, s86")
    a("s_mov_b32 s87, 0x00020000")
    a("s_cselect_b32 s91, 0, 96")
    a("s_cselect_b32 s92, 32, 20")
    a("s_cselect_b64 s[94:95], -1, 0")
    a("s_sub_u32 s91, s48, s91")
    a("s_and_b32 s93, s91, 1")
    a("s_lshr_b32 s91, s91, 1")
    a("s_lshl_b32 s93, s93, 2")
    a("s_add_u32 s93, s93, s42")
    a("s_mul_i32 s88, s91, s92")
    a("s_mul_i32 s88, s88, 1280")
    a("s_mul_i32 s53, s93, 160")
    a("s_add_u32 s88, s88, s53")
    a("s_mul_i32 s53, s93, 48")
    a("s_add_u32 s53, s53, s91")
    a("s_mul_i32 s53, s53, 5120")
    a(f"s_add_u32 s53, s53, {WDF}")
    a("s_lshl_b32 s54, s91, 3")
    a("s_add_u32 s54, s54, s93")
    a("s_mul_i32 s54, s54, 5120")
    a(f"s_add_u32 s54, s54, {WOF}")
    a("s_cmp_lt_u32 s48, 96")
    a("s_cselect_b32 s89, s53, s54")
    a("s_add_u32 s90, s89, 4096")
    a("s_movk_i32 s54, 1280")
    a(f"v_mov_b32 v{t+7}, {OOB}")
    for j in range(5):
        a(f"v_add_u32 v{t}, {64*j}, v{V_L}")
        a(f"v_mul_u32_u24 v{t+1}, 6554, v{t}")
        a(f"v_lshrrev_b32 v{t+1}, 16, v{t+1}")
        a(f"v_mul_u32_u24 v{t+2}, 10, v{t+1}")
        a(f"v_sub_u32 v{t+2}, v{t}, v{t+2}")
        a(f"v_bfe_u32 v{t+3}, v{t+1}, 2, 1")
        a(f"v_lshlrev_b32 v{t+3}, 4, v{t+3}")
        a(f"v_lshrrev_b32 v{t+4}, 3, v{t+1}")
        a(f"v_lshl_add_u32 v{t+3}, v{t+4}, 2, v{t+3}")
        a(f"v_and_b32 v{t+4}, 3, v{t+1}")
        a(f"v_add_u32 v{t+3}, v{t+3}, v{t+4}")
        a(f"v_cndmask_b32 v{t+3}, v{t+1}, v{t+3}, s[94:95]")
        a(f"v_cmp_gt_u32 vcc, s92, v{t+3}")
        a(f"v_mul_lo_u32 v{t+3}, v{t+3}, s54")
        a(f"v_lshl_add_u32 v{t+3}, v{t+2}, 4, v{t+3}")
        a(f"v_cndmask_b32 v{V_EA+j}, v{t+7}, v{t+3}, vcc")
    lane_grc(a)
    a("s_mul_i32 s53, s42, 5120")
    a(f"s_add_u32 s53, s53, {SIDE_LDS}")
    a(f"v_mul_u32_u24 v{t}, 160, v{t+11}")
    a(f"v_add_u32 v{t}, s53, v{t}")
    a(f"v_lshl_add_u32 v{V_EA+5}, v{t+10}, 4, v{t}")
    a(f"v_lshl_add_u32 v{V_EA+6}, v{t+10}, 3, v{t}")
    a(f"v_add_u32 v{V_EA+7}, s53, v{V_L16}")

def side_loads(a):
    for j in range(5):
        a(f"buffer_load_dwordx4 {ar(A_WD+20+4*j)}, v{V_EA+j}, s[84:87], s88 offen")

def side_writes(a):
    for j in range(5):
        a(f"ds_write_b128 v{V_EA+7}, {ar(A_WD+20+4*j)} offset:{j*1024}")

def side_reads(a):
    for t in range(5):
        for hh in range(2):
            if t < 4: a(f"ds_read_b64_tr_b16 {ar(A_WD+4*t+2*hh, 2)}, v{V_EA+5} offset:{hh*640 + 64*(t//2) + 8*(t%2)}")
            else: a(f"ds_read_b64_tr_b16 {ar(A_WD+4*t+2*hh, 2)}, v{V_EA+6} offset:{hh*640 + 128}")

def side_stores(a):
    for t in range(5):
        if t < 4: a(f"buffer_store_dwordx4 {ar(A_WD+4*t)}, v{V_L16}, s[20:23], s89 offen offset:{t*1024}{SC}")
        else: a(f"buffer_store_dwordx4 {ar(A_WD+4*t)}, v{V_L16}, s[20:23], s90 offen{SC}")

def phi8(a, regs, tmp):
    n = len(regs)
    for i in range(0, n, 2): a(f"v_pk_mul_f32 {vr(tmp+i,2)}, {vr(regs[i],2)}, s[70:71]")
    for i in range(n): a(f"v_exp_f32 v{tmp+i}, v{tmp+i} clamp")
    for i in range(0, n, 2): a(f"v_pk_add_f32 {vr(regs[i],2)}, {vr(regs[i],2)}, s[72:73]")
    for i in range(0, n, 2): a(f"v_pk_add_f32 {vr(tmp+i,2)}, {vr(tmp+i,2)}, s[74:75]")
    for i in range(n): a(f"v_max_f32 v{regs[i]}, v{regs[i]}, v{tmp+i}")

def phi_consts(a):
    a(f"s_mov_b32 s70, {LOG2E}"); a(f"s_mov_b32 s71, {LOG2E}")
    a(f"s_mov_b32 s72, {ONE_EPS}"); a(f"s_mov_b32 s73, {ONE_EPS}")
    a(f"s_mov_b32 s74, {EPS}"); a(f"s_mov_b32 s75, {EPS}")

def emit_groups(a, groups, n):
    for _ in range(n):
        if groups:
            g = groups.pop(0)
            for x in g[:-1]: a(x)
            if len(g) > 1: a("s_nop 0")
            a(g[-1])

def gen():
    a = Asm()
    t = V_T
    stamp(a, 0)
    a("s_load_dwordx16 s[24:39], s[0:1], 0")
    a("s_load_dwordx4 s[96:99], s[0:1], 64")
    a("s_load_dwordx2 s[40:41], s[0:1], 80")
    a("s_cmp_ge_u32 s2, 256")
    a("s_cbranch_scc1 L_end")
    a(f"v_and_b32 v{V_L}, 63, v0")
    a(f"v_lshrrev_b32 v{t}, 6, v0")
    a("s_and_b32 s3, s2, 3")
    a(f"v_readfirstlane_b32 s42, v{t}")
    a("s_bfe_u32 s4, s2, 0x10002")
    a("s_lshr_b32 s5, s2, 3")
    a("s_mov_b32 s44, 0")
    a("s_mov_b32 s45, 0")
    a(f"v_lshlrev_b32 v{V_L16}, 4, v{V_L}")
    a(f"s_mov_b32 s101, {FWB}")
    a(f"v_mov_b32 v{V_Z}, 0")
    a(f"v_lshrrev_b32 v{V_FWA}, 1, v{V_L}")
    a(f"v_lshlrev_b32 v{V_FWA}, 8, v{V_FWA}")
    a(f"v_and_b32 v{t+1}, 16, v{V_L16}")
    a(f"v_add3_u32 v{V_FWA}, v{V_FWA}, v{t+1}, s101")
    a("s_cmp_lt_u32 s5, 8")
    a("s_cbranch_scc1 L_kv")
    a("s_cmp_lt_u32 s5, 12")
    a("s_cbranch_scc1 L_q")

    a("s_sub_u32 s6, s5, 12")
    a("s_mul_i32 s7, s6, 43")
    a("s_lshr_b32 s7, s7, 7")
    a("s_mul_i32 s49, s7, 3")
    a("s_sub_u32 s49, s6, s49")
    a("s_mul_i32 s6, s4, 7")
    a("s_add_u32 s6, s6, s7")
    a("s_cmp_lt_u32 s5, 30")
    a("s_cbranch_scc1 L_gu_dec")
    a("s_mov_b32 s6, 6")
    a("s_sub_u32 s49, s5, 30")
    a("s_lshl_b32 s7, s4, 1")
    a("s_add_u32 s49, s49, s7")
    a("s_cmp_eq_u32 s49, 3")
    a("s_cbranch_scc1 L_sideonly")
    a.label("L_gu_dec")
    a("s_mul_i32 s7, s3, 3")
    a("s_add_u32 s7, s7, s49")
    a("s_mul_i32 s48, s6, 12")
    a("s_add_u32 s48, s48, s7")
    a(f"v_lshrrev_b32 v{t}, 4, v{V_L}")
    a(f"v_bfe_u32 v{t+1}, v{V_L}, 1, 3")
    a(f"v_xor_b32 v{t+1}, v{t+1}, v{t}")
    a(f"v_and_b32 v{t+2}, 1, v{V_L}")
    a(f"v_lshlrev_b32 v{t+2}, 4, v{t+2}")
    a("s_lshl_b32 s53, s42, 4")
    a(f"v_add_u32 v{t}, s53, v{t}")
    a("s_movk_i32 s54, 3072")
    a(f"v_mul_lo_u32 v{t}, v{t}, s54")
    a("s_lshl_b32 s53, s7, 8")
    a(f"v_add3_u32 v{t}, v{t}, v{t+2}, s53")
    for j in range(4):
        if (j >> 1) & 1:
            a(f"v_xor_b32 v{t+3}, 4, v{t+1}")
            a(f"v_lshl_add_u32 v{t+3}, v{t+3}, 5, v{t}")
        else:
            a(f"v_lshl_add_u32 v{t+3}, v{t+1}, 5, v{t}")
        a(f"v_add_u32 v{V_DMA+j}, {4*j*3072}, v{t+3}")
    a("s_mul_i32 s55, s6, 160")
    x_voffsets(a, V_DMA+4, 5, "s55")
    a("s_mul_i32 s50, s42, 5120")
    a("s_lshl_b32 s51, s42, 12")
    a("s_add_u32 s52, s51, 36864")
    a("s_add_u32 s51, s51, 20480")
    a("s_waitcnt lgkmcnt(0)")
    srd(a, 8, 24, 25, 2048*1280)
    srd(a, 12, 32, 33, 640*3072)
    srd(a, 16, 34, 35, 640*3072)
    srd(a, 20, 40, 41, WSSZ); epoch_load(a)
    def dma_gu():
        s = []
        for j in range(4):
            s.append(("s_add_u32 m0, s46, s51" if j == 0 else "s_addk_i32 m0, 0x400",
                      f"buffer_load_dwordx4 v{V_DMA+j}, s[12:15], s45 offen lds"))
        for j in range(4):
            s.append(("s_add_u32 m0, s46, s52" if j == 0 else "s_addk_i32 m0, 0x400",
                      f"buffer_load_dwordx4 v{V_DMA+j}, s[16:19], s45 offen lds"))
        for j in range(5):
            s.append(("s_add_u32 m0, s46, s50" if j == 0 else "s_addk_i32 m0, 0x400",
                      f"buffer_load_dwordx4 v{V_DMA+4+j}, s[8:11], s44 offen lds"))
        return s
    TG = dict(name='gu', NT=5, NF=8, nfb=4, ksb=8192, hhb=1024, wstep=64*3072, tokrows=False, side=True, npl2=13,
              fread=lambda f: (V_FB + (f % 4), 16384 * (f // 4)), dma=dma_gu,
              order=[((tt*8+f)*4, tt, f) for tt in range(5) for f in range(8)])
    issue_stage(a, TG, 0)
    stamp(a, 1)
    a("s_lshr_b32 s56, s42, 1")
    a("s_and_b32 s55, s42, 1")
    a("s_mul_i32 s53, s56, 10240")
    tok_bases(a, "s53")
    lane_grc(a)
    a(f"v_and_b32 v{t}, 1, v{t+8}")
    a(f"v_lshl_or_b32 v{t}, v{t}, 2, v{t+9}")
    a(f"v_lshlrev_b32 v{t+1}, 8, v{t+11}")
    a(f"v_lshl_add_u32 v{t+1}, v{t+10}, 3, v{t+1}")
    a(f"v_add_u32 v{t+1}, 20480, v{t+1}")
    a("s_lshl_b32 s53, s55, 2")
    for i in range(4):
        a(f"s_add_u32 s54, s53, {i}")
        a(f"v_xor_b32 v{t+2}, s54, v{t}")
        a(f"v_lshl_add_u32 v{V_FB+i}, v{t+2}, 5, v{t+1}")
    zero_acc(a, 160)
    issue_stage(a, TG, 1)
    side_setup(a)
    p2_params(a)
    a("s_lshl_b32 s53, s48, 8")
    a(f"s_add_u32 s83, s53, {F1B + 96*256}")
    first_reads(a, TG)
    rest = mainloop(a, TG)
    a(f"s_mov_b32 s70, {NLOG2E}"); a(f"s_mov_b32 s71, {NLOG2E}")
    a("s_mov_b32 s72, 1.0"); a("s_mov_b32 s73, 1.0")
    a("s_mul_i32 s53, s6, 10")
    a("s_mul_i32 s54, s56, 5")
    a("s_add_u32 s53, s53, s54")
    a("s_lshl_b32 s74, s7, 2")
    a("s_lshl_b32 s55, s55, 1")
    a("s_add_u32 s74, s74, s55")
    for tt in range(5):
        a("s_lshr_b32 s54, s53, 2")
        a("s_mul_i32 s54, s54, 68")
        a("s_add_u32 s54, s54, s74")
        a("s_lshl_b32 s54, s54, 2")
        a("s_and_b32 s55, s53, 3")
        a("s_add_u32 s54, s54, s55")
        a("s_lshl_b32 s54, s54, 10")
        a("s_cmp_lt_u32 s53, 128")
        a(f"s_cselect_b32 s54, s54, {OOB}")
        a(f"s_cselect_b32 s22, {WSSZ}, 0")
        a("s_add_u32 s55, s54, 4096")
        a("s_add_u32 s53, s53, 1")
        for u in range(2):
            G = (tt*8 + 2*u)*4; U = (tt*8 + 4 + 2*u)*4
            tm = t + 16*u
            for i in range(0, 8, 2): a(f"v_pk_mul_f32 {vr(tm+i,2)}, {vr(G+i,2)}, s[70:71]")
            for i in range(8): a(f"v_exp_f32 v{tm+i}, v{tm+i}")
            for i in range(0, 8, 2): a(f"v_pk_add_f32 {vr(tm+i,2)}, {vr(tm+i,2)}, s[72:73]")
            for i in range(8): a(f"v_rcp_f32 v{tm+i}, v{tm+i}")
            for i in range(0, 8, 2): a(f"v_pk_mul_f32 {vr(tm+i,2)}, {vr(tm+i,2)}, {vr(U+i,2)}")
            for i in range(4): a(f"v_cvt_pk_bf16_f32 v{tm+8+i}, v{tm+2*i}, v{tm+2*i+1}")
            a(f"buffer_store_dwordx4 {vr(tm+8)}, v{V_L16}, s[20:23], s{54+u} offen{SC}")
        a(f"s_mov_b32 s22, {WSSZ}")
        emit_groups(a, rest, 6)
    assert not rest
    a("s_branch L_signal")

    a.label("L_sideonly")
    a("s_add_u32 s48, s3, 156")
    a("s_waitcnt lgkmcnt(0)")
    srd(a, 20, 40, 41, WSSZ); epoch_load(a)
    side_setup(a)
    side_loads(a)
    p2_params(a)
    a("s_waitcnt vmcnt(0)")
    side_writes(a)
    side_reads(a)
    a("s_waitcnt lgkmcnt(0)")
    side_stores(a)
    make_tag(a)
    a("s_waitcnt vmcnt(0)")
    a("s_barrier")
    a("s_cmp_lg_u32 s42, 0")
    a("s_cbranch_scc1 L_so_nosig")
    flag_store(a, "s93")
    a(FW_LOAD)
    a("s_waitcnt vmcnt(0)")
    spin_until(a, "sofw", FW_LOAD, FW_CHECK, sleep=32)
    a.label("L_so_nosig")
    a("s_barrier")
    for x in preload1(): a(x)
    a("s_waitcnt vmcnt(16)")
    emit_groups(a, preload2(), 30)
    a("s_waitcnt vmcnt(0)")
    for i in range(1, 6): stamp(a, i)
    a("s_branch L_p2")

    def dma_qkv():
        s = []
        for j in range(8):
            s.append(("s_add_u32 m0, s46, s50" if j == 0 else "s_addk_i32 m0, 0x400",
                      f"buffer_load_dwordx4 v{V_DMA+j}, s[8:11], s44 offen lds"))
        for j in range(5):
            s.append(("s_add_u32 m0, s46, s51" if j == 0 else "s_addk_i32 m0, 0x400",
                      f"buffer_load_dwordx4 v{V_DMA+8+j}, s[12:15], s45 offen lds"))
        return s
    def qkv_srds():
        a("s_lshl_b32 s50, s42, 13")
        a("s_mul_i32 s51, s42, 5120")
        a("s_add_u32 s51, s51, 32768")
        a("s_waitcnt lgkmcnt(0)")
        srd(a, 8, 24, 25, 2048*1280)
        srd(a, 12, 26, 27, 640*3840)
        srd(a, 20, 40, 41, WSSZ); epoch_load(a)
    def w_npi(j):
        a(f"v_add_u32 v{t}, s53, v{V_L}")
        if j: a(f"v_add_u32 v{t}, {64*j}, v{t}")
        a(f"v_mul_u32_u24 v{t+1}, 3277, v{t}")
        a(f"v_lshrrev_b32 v{t+1}, 16, v{t+1}")
        a(f"v_mul_u32_u24 v{t+2}, 20, v{t+1}")
        a(f"v_sub_u32 v{t+2}, v{t}, v{t+2}")
        a(f"v_bfe_u32 v{t+3}, v{t+1}, 3, 1")

    a.label("L_q")
    a("s_sub_u32 s6, s5, 8")
    a("s_lshl_b32 s7, s4, 2")
    a("s_add_u32 s6, s6, s7")
    a("s_lshl_b32 s55, s6, 8")
    a("s_lshl_b32 s56, s3, 4")
    x_voffsets(a, V_DMA, 8, "s55", xorreg="s56")
    a("s_mul_i32 s53, s42, 320")
    a("s_movk_i32 s54, 3840")
    a("s_mul_i32 s57, s3, 320")
    for j in range(5):
        w_npi(j)
        a(f"v_xor_b32 v{t+2}, v{t+2}, v{t+3}")
        a(f"v_lshrrev_b32 v{t+3}, 2, v{t+2}")
        a(f"v_and_b32 v{t+2}, 3, v{t+2}")
        a(f"v_mul_u32_u24 v{t+2}, 80, v{t+2}")
        a(f"v_lshl_add_u32 v{t+2}, v{t+3}, 4, v{t+2}")
        a(f"v_mul_lo_u32 v{t+1}, v{t+1}, s54")
        a(f"v_add3_u32 v{V_DMA+8+j}, v{t+1}, v{t+2}, s57")
    qkv_srds()
    srd(a, 16, 38, 39, 1280)
    a(f"s_mov_b32 m0, {GWL}")
    a("s_nop 0")
    a(f"buffer_load_dwordx4 v{V_L16}, s[16:19], 0 offen lds")
    a(f"buffer_load_dwordx4 v{V_L16}, s[16:19], 0 offen offset:1024 lds")
    TQ = dict(name='q', NT=4, NF=10, nfb=2, ksb=10240, hhb=1280, wstep=64*3840, tokrows=False, gate=True, npl2=13,
              fread=lambda f: (V_FB + (f % 2), 64 * (f // 2)), dma=dma_qkv,
              order=[((tt*10+f)*4, tt, f) for tt in range(4) for f in range(10)])
    issue_stage(a, TQ, 0)
    stamp(a, 1)
    a("s_lshl_b32 s53, s42, 13")
    tok_bases(a, "s53")
    lane_grc(a)
    a(f"v_and_b32 v{t}, 1, v{t+8}")
    a(f"v_xor_b32 v{t}, v{t}, v{t+10}")
    a(f"v_mul_u32_u24 v{t+1}, 320, v{t+11}")
    a(f"v_lshl_add_u32 v{t+1}, v{t}, 4, v{t+1}")
    a(f"v_add_u32 v{t+1}, 32768, v{t+1}")
    a(f"v_and_b32 v{t+2}, 1, v{t+10}")
    a(f"v_lshl_add_u32 v{V_FB}, v{t+2}, 3, v{t+1}")
    a(f"v_xor_b32 v{V_FB+1}, 8, v{V_FB}")
    a(f"v_lshlrev_b32 v{V_GW}, 4, v{t+8}")
    a(f"v_add_u32 v{V_GW}, {GWL}, v{V_GW}")
    zero_acc(a, 164)
    issue_stage(a, TQ, 1)
    p2_params(a)
    a("s_lshl_b32 s53, s6, 2")
    a("s_add_u32 s53, s53, s3")
    a("s_lshl_b32 s53, s53, 8")
    a(f"s_add_u32 s83, s53, {F1B + 64*256}")
    for tt in range(4):
        a(f"s_xor_b32 s53, s3, {tt}")
        a("s_lshl_b32 s53, s53, 10")
        a(f"v_add_u32 v{V_EA+tt}, s53, v{V_L16}")
    first_reads(a, TQ)
    rest = mainloop(a, TQ)
    phi_consts(a)
    a("s_lshl_b32 s53, s6, 2")
    a("s_add_u32 s53, s53, s42")
    a("s_mul_i32 s54, s53, 68")
    a("s_mul_i32 s55, s3, 5")
    a("s_add_u32 s54, s54, s55")
    a("s_add_u32 s54, s54, 48")
    a("s_lshl_b32 s84, s54, 12")
    for i in range(1, 5): a(f"s_add_u32 s{84+i}, s84, {4096*i}")
    a(f"v_mul_f32 v{t}, {NLOG2E}, v{V_GL}")
    a(f"v_exp_f32 v{t}, v{t}")
    a(f"v_add_f32 v{t}, 1.0, v{t}")
    a(f"v_rcp_f32 v{t}, v{t}")
    a("s_lshl_b32 s54, s53, 2")
    a("s_add_u32 s54, s54, s3")
    a("s_lshl_b32 s54, s54, 6")
    a(f"s_add_u32 s54, s54, {GOFF}")
    a(f"v_lshlrev_b32 v{t+1}, 2, v{V_L}")
    a(f"v_cmp_gt_u32 vcc, 16, v{V_L}")
    a(f"v_mov_b32 v{t+2}, {OOB}")
    a(f"v_cndmask_b32 v{t+1}, v{t+2}, v{t+1}, vcc")
    a(f"buffer_store_dword v{t}, v{t+1}, s[20:23], s54 offen{SC}")
    for tt in range(4):
        for i in range(5):
            R = (tt*10 + 2*i)*4
            tm = t + 4 + 16*(i % 2)
            phi8(a, list(range(R, R+8)), tm)
            for d in range(4): a(f"v_cvt_pk_bf16_f32 v{tm+8+d}, v{R+2*d}, v{R+2*d+1}")
            a(f"buffer_store_dwordx4 {vr(tm+8)}, v{V_EA+tt}, s[20:23], s{84+i} offen{SC}")
            emit_groups(a, rest, 2)
    assert not rest
    a("s_branch L_signal")

    a.label("L_kv")
    a("s_lshr_b32 s6, s5, 1")
    a("s_lshl_b32 s7, s4, 2")
    a("s_add_u32 s6, s6, s7")
    a("s_and_b32 s7, s5, 1")
    a("s_lshl_b32 s49, s3, 1")
    a("s_add_u32 s7, s7, s49")
    a("s_lshl_b32 s55, s6, 8")
    x_voffsets(a, V_DMA, 8, "s55")
    a("s_mul_i32 s53, s42, 320")
    a("s_movk_i32 s54, 3840")
    a("s_mul_i32 s57, s7, 160")
    a("s_add_u32 s57, s57, 1280")
    for j in range(5):
        w_npi(j)
        a(f"v_lshlrev_b32 v{t+3}, 1, v{t+3}")
        a(f"v_xor_b32 v{t+2}, v{t+2}, v{t+3}")
        a(f"v_mul_u32_u24 v{t+3}, 52, v{t+2}")
        a(f"v_lshrrev_b32 v{t+3}, 8, v{t+3}")
        a(f"v_mul_u32_u24 v{t+4}, 5, v{t+3}")
        a(f"v_sub_u32 v{t+2}, v{t+2}, v{t+4}")
        a(f"v_lshlrev_b32 v{t+2}, 4, v{t+2}")
        a(f"v_lshrrev_b32 v{t+4}, 1, v{t+3}")
        a(f"v_mad_u32_u24 v{t+2}, v{t+4}, 64, v{t+2}")
        a(f"v_lshl_add_u32 v{t+2}, v{t+4}, 4, v{t+2}")
        a(f"v_and_b32 v{t+3}, 1, v{t+3}")
        a(f"v_mul_u32_u24 v{t+3}, 1280, v{t+3}")
        a(f"v_add_u32 v{t+2}, v{t+2}, v{t+3}")
        a(f"v_mul_lo_u32 v{t+1}, v{t+1}, s54")
        a(f"v_add3_u32 v{V_DMA+8+j}, v{t+1}, v{t+2}, s57")
    qkv_srds()
    TK = dict(name='kv', NT=8, NF=5, nfb=2, ksb=10240, hhb=1280, wstep=64*3840, tokrows=True, npl2=13,
              fread=lambda f: (V_FB + (f % 2), 64 * (f // 2)), dma=dma_qkv,
              order=[((tt*5+f)*4, tt, f) for tt in range(8) for f in range(5)])
    issue_stage(a, TK, 0)
    stamp(a, 1)
    a("s_lshr_b32 s56, s42, 1")
    a("s_and_b32 s55, s42, 1")
    a("s_lshl_b32 s53, s56, 14")
    tok_bases(a, "s53")
    lane_grc(a)
    a(f"v_and_b32 v{t}, 1, v{t+8}")
    a(f"v_lshlrev_b32 v{t}, 1, v{t}")
    a(f"v_lshrrev_b32 v{t+1}, 1, v{t+10}")
    a("s_mul_i32 s53, s55, 10")
    a(f"v_add_u32 v{t+1}, s53, v{t+1}")
    a(f"v_mul_u32_u24 v{t+2}, 320, v{t+11}")
    a(f"v_and_b32 v{t+3}, 1, v{t+10}")
    a(f"v_lshl_add_u32 v{t+2}, v{t+3}, 3, v{t+2}")
    a(f"v_add_u32 v{t+2}, 32768, v{t+2}")
    for p in range(2):
        a(f"v_add_u32 v{t+3}, {2*p}, v{t+1}")
        a(f"v_xor_b32 v{t+3}, v{t+3}, v{t}")
        a(f"v_lshl_add_u32 v{V_FB+p}, v{t+3}, 4, v{t+2}")
    zero_acc(a, 160)
    issue_stage(a, TK, 1)
    pairs = [(2,0),(3,0),(2,1),(3,1),(4,1),(3,2),(4,2),(None,0),(None,1),(None,2)]
    a(f"v_and_b32 v{t}, 15, v{V_L}")
    a(f"v_mov_b32 v{t+7}, {OOB}")
    for n, (Tv, Tk) in enumerate(pairs):
        a(f"v_add_u32 v{t+1}, {16*Tk}, v{t}")
        a(f"v_mul_u32_u24 v{t+2}, 96, v{t+1}")
        if Tv is not None:
            a(f"v_cmp_lt_u32 vcc, 19, v{t+1}")
            a(f"v_cndmask_b32 v{t+3}, 0, 5, vcc")
            a(f"v_add_u32 v{t+4}, {(4*Tv-10) & 0xffffffff}, v{t+8}")
            a(f"v_sub_u32 v{t+4}, v{t+4}, v{t+3}")
            a(f"v_lshl_add_u32 v{t+2}, v{t+4}, 4, v{t+2}")
            a(f"v_cmp_gt_u32 vcc, 5, v{t+4}")
        else:
            a(f"v_add_u32 v{t+2}, 80, v{t+2}")
            a(f"v_cmp_eq_u32 vcc, 0, v{t+8}")
        a(f"v_cndmask_b32 v{t+2}, v{t+7}, v{t+2}, vcc")
        a(f"v_cmp_gt_u32 vcc, 40, v{t+1}")
        a(f"v_cndmask_b32 v{V_EA+n}, v{t+7}, v{t+2}, vcc")
    p2_params(a)
    a("s_lshl_b32 s53, s7, 3")
    a("s_add_u32 s53, s53, s6")
    a("s_lshl_b32 s53, s53, 8")
    a(f"s_add_u32 s83, s53, {F1B}")
    first_reads(a, TK)
    rest = mainloop(a, TK)
    phi_consts(a)
    a("s_lshl_b32 s53, s6, 1")
    a("s_add_u32 s53, s53, s56")
    a("s_lshl_b32 s53, s53, 5")
    a("s_lshl_b32 s54, s7, 2")
    a("s_add_u32 s53, s53, s54")
    a("s_lshl_b32 s54, s55, 1")
    a("s_add_u32 s53, s53, s54")
    a("s_mul_i32 s53, s53, 1920")
    a(f"s_add_u32 s53, s53, {KVP}")
    a(f"v_and_b32 v{t}, 15, v{V_L}")
    a(f"v_cmp_gt_u32 s[76:77], 8, v{t}")
    a(f"v_cmp_eq_u32 vcc, 0, v{t}")
    a(f"v_mov_b32 v{t+1}, 0x3f803f80")
    for d in range(4): a(f"v_cndmask_b32 v{t+32+d}, 0, v{t+1}, vcc")
    ONES = t + 32
    KD = 0
    FR = t + 36
    for u in range(4):
        for half in range(2):
            tt = 2*u + half
            R0 = (tt*5)*4
            phi8(a, list(range(R0, R0+8)), t)
            R2 = (tt*5+2)*4
            for i in range(0, 4, 2): a(f"v_pk_mul_f32 {vr(t+8+i,2)}, {vr(R2+i,2)}, s[70:71]")
            for i in range(4): a(f"v_exp_f32 v{t+8+i}, v{t+8+i} clamp")
            for i in range(0, 4, 2): a(f"v_pk_add_f32 {vr(t+12+i,2)}, {vr(R2+i,2)}, s[72:73]")
            for i in range(0, 4, 2): a(f"v_pk_add_f32 {vr(t+8+i,2)}, {vr(t+8+i,2)}, s[74:75]")
            for i in range(4): a(f"v_max_f32 v{t+8+i}, v{t+8+i}, v{t+12+i}")
            for i in range(4): a(f"v_cndmask_b32 v{R2+i}, v{R2+i}, v{t+8+i}, s[76:77]")
            for f in range(5):
                R = (tt*5+f)*4
                for d in range(2): a(f"v_cvt_pk_bf16_f32 v{FR+4*f+2*half+d}, v{R+2*d}, v{R+2*d+1}")
            emit_groups(a, rest, 4)
        for n, (Tv, Tk) in enumerate(pairs):
            A = vr(FR+4*Tv) if Tv is not None else vr(ONES)
            C = ar(KD+4*n) if u else "0"
            a(f"v_mfma_f32_16x16x32_bf16 {ar(KD+4*n)}, {A}, {vr(FR+4*Tk)}, {C}")
    assert not rest
    for n in range(10):
        a(f"buffer_store_dwordx4 {ar(KD+4*n)}, v{V_EA+n}, s[20:23], s53 offen{SC}")

    a.label("L_signal")
    stamp(a, 5)
    a("s_waitcnt vmcnt(0)")
    a("s_barrier")
    a("s_cmp_lg_u32 s42, 0")
    a("s_cbranch_scc1 L_p2")
    flag_store(a, "s83")
    a.label("L_p2")
    stamp(a, 6)
    phase2(a)
    a.label("L_end")
    a("s_endpgm")
    return a

def phase2(a):
    ACC = 0; PQ = 80
    VL = V_L; VL16 = V_L16
    VH = 165
    VG = 169
    VDEN = 176
    VMS = 173; VFL = 174; VFV = 175; VFK = 193; VFM = 194
    VWL = 192
    VWA = 160
    T = 200
    MU = PQ
    def hslot(k): return (k % 6) * 16
    STAGE = [[96, 100, 104, 108, 112], [116, 240, 244, 248, 252]]
    AMZ = 120
    srd(a, 8, 96, 97, 2048*1280)
    for tau in range(4):
        a(f"s_xor_b32 s53, s42, {tau}")
        a("s_lshl_b32 s53, s53, 10")
        a(f"v_add_u32 v{VH+tau}, s53, v{VL16}")
    a("s_mul_i32 s53, s80, 68")
    a("s_mul_i32 s54, s42, 12")
    a("s_add_u32 s54, s54, s53")
    a("s_lshl_b32 s44, s54, 12")
    a("s_mul_i32 s54, s42, 5")
    a("s_add_u32 s54, s54, s53")
    a("s_add_u32 s54, s54, 48")
    a("s_lshl_b32 s45, s54, 12")
    a("s_lshr_b32 s53, s80, 2")
    a("s_lshl_b32 s54, s80, 1")
    a("s_mul_i32 s3, s54, 205")
    a("s_lshr_b32 s3, s3, 10")
    a("s_add_u32 s54, s54, 1")
    a("s_mul_i32 s4, s54, 205")
    a("s_lshr_b32 s4, s4, 10")
    a("s_mul_i32 s3, s3, 12")
    a("s_add_u32 s3, s3, 96")
    a("s_mul_i32 s4, s4, 12")
    a("s_add_u32 s4, s4, 84")
    a("s_lshl_b32 s5, s53, 3")
    a("s_sub_u32 s5, s5, 24")
    a("s_lshl_b32 s53, s53, 2")
    a("s_add_u32 s53, s53, 64")
    a(f"v_and_b32 v{T+2}, 3, v{VL}")
    a(f"v_add_u32 v{T+2}, s53, v{T+2}")
    a(f"v_add_u32 v{T+1}, s5, v{VL}")
    a(f"v_cmp_gt_u32 vcc, 32, v{VL}")
    a(f"v_cndmask_b32 v{T+2}, v{T+2}, v{T+1}, vcc")
    a(f"v_add_u32 v{T+1}, s4, v{VL}")
    a(f"v_cmp_gt_u32 vcc, 24, v{VL}")
    a(f"v_cndmask_b32 v{T+2}, v{T+2}, v{T+1}, vcc")
    a(f"v_add_u32 v{T+1}, s3, v{VL}")
    a(f"v_cmp_gt_u32 vcc, 12, v{VL}")
    a(f"v_cndmask_b32 v{T+2}, v{T+2}, v{T+1}, vcc")
    a(f"v_lshlrev_b32 v{VFL}, 8, v{T+2}")
    a(f"v_add_u32 v{VFL}, {F1B}, v{VFL}")
    LH = f"buffer_load_dword v{VFV}, v{VFL}, s[20:23], 0 offen{SC}"
    a("s_cmp_lg_u32 s42, 0")
    a("s_cbranch_scc1 L_p2_nolk")
    a(LH)
    a.label("L_p2_nolk")
    a("s_lshl_b32 s54, s81, 13")
    a(f"s_add_u32 s54, s54, {F2B}")
    a(f"v_and_b32 v{T}, 31, v{VL}")
    a(f"v_lshl_add_u32 v{VFM}, v{T}, 8, s54")
    a("s_lshl_b32 s53, s80, 8")
    a("s_add_u32 s56, s54, s53")
    LM = f"buffer_load_dword v{VFV}, v{VFM}, s[20:23], 0 offen{SC}"
    CHK = [f"v_cmp_eq_u32 vcc, s100, v{VFV}", "s_cmp_eq_u64 vcc, -1"]
    def wg_wait(name, load, vm, sleep=2):
        a("s_cmp_lg_u32 s42, 0")
        a(f"s_cbranch_scc1 L_{name}_ok")
        a(f"s_waitcnt vmcnt({vm})")
        spin_until(a, name, load, CHK, sleep=sleep)
        a("s_barrier")
    def w0(instr_list, name):
        a("s_cmp_lg_u32 s42, 0")
        a(f"s_cbranch_scc1 L_{name}")
        for x in instr_list:
            if callable(x): x()
            else: a(x)
        a.label(f"L_{name}")
    zero_acc(a, 80)
    a("s_lshr_b32 s50, s80, 3")
    a("s_bfe_u32 s51, s80, 0x20001")
    a("s_and_b32 s52, s80, 1")
    a("s_and_b32 s54, s42, 1")
    a(f"v_mov_b32 v{T+7}, {OOB}")
    a(f"v_cmp_gt_u32 vcc, 56, v{VL}")
    a(f"v_cndmask_b32 v{T+3}, v{T+7}, v{VL16}, vcc")
    a(f"v_and_b32 v{T}, 15, v{VL}")
    a(f"v_lshrrev_b32 v{T+1}, 4, v{VL}")
    a("s_lshl_b32 s3, s42, 11")
    a(f"s_add_u32 s3, s3, {MSCR}")
    a(f"v_add_u32 v{T+8}, s3, v{VL16}")
    a("s_lshl_b32 s3, s54, 4")
    a(f"v_add_u32 v{T+2}, s3, v{T}")
    a(f"v_mul_u32_u24 v{T+9}, 96, v{T+2}")
    a(f"v_lshl_add_u32 v{T+9}, v{T+1}, 5, v{T+9}")
    a(f"v_cmp_gt_u32 vcc, 20, v{T+2}")
    a(f"v_cmp_gt_u32 s[76:77], 3, v{T+1}")
    a("s_and_b64 s[76:77], s[76:77], vcc")
    a(f"v_mov_b32 v{T+10}, 1920")
    a(f"v_cndmask_b32 v{T+9}, v{T+10}, v{T+9}, s[76:77]")
    a(f"v_add_u32 v{T+9}, {MSCR}, v{T+9}")
    a("s_cmp_lt_u32 s42, 2")
    a("s_cbranch_scc1 L_p2_noones")
    a("s_lshl_b32 s3, s51, 2")
    a("s_add_u32 s3, s3, s52")
    a("s_add_u32 s3, s3, 32")
    a(f"v_cmp_eq_u32 vcc, s3, v{VL}")
    a(f"v_mov_b32 v{T+4}, 0x3f80")
    a(f"v_cndmask_b32 v{T+11}, 0, v{T+4}, vcc")
    a(f"v_accvgpr_write_b32 a{A_WO+8}, 0")
    a(f"v_accvgpr_write_b32 a{A_WO+9}, 0")
    a(f"v_accvgpr_write_b32 a{A_WO+10}, v{T+11}")
    a(f"v_accvgpr_write_b32 a{A_WO+11}, 0")
    a.label("L_p2_noones")
    a("s_lshl_b32 s3, s54, 2")
    a(f"v_add_u32 v{T+4}, s3, v{T+1}")
    a("s_mul_i32 s4, s52, 5")
    a(f"v_add_u32 v{T+5}, s4, v{T+4}")
    a(f"v_lshrrev_b32 v{T+6}, 1, v{T+5}")
    a(f"v_mul_u32_u24 v{T+6}, 6144, v{T+6}")
    a(f"v_xor_b32 v{T+5}, s51, v{T+5}")
    a(f"v_and_b32 v{T+5}, 1, v{T+5}")
    a(f"v_lshl_add_u32 v{T+6}, v{T+5}, 3, v{T+6}")
    a(f"v_lshl_add_u32 v{T+6}, v{T}, 4, v{T+6}")
    a(f"v_cmp_gt_u32 vcc, 5, v{T+4}")
    a(f"v_cndmask_b32 v{VMS}, v{T+7}, v{T+6}, vcc")
    a("s_mul_i32 s3, s81, 20")
    a("s_mul_i32 s4, s50, 5")
    a("s_add_u32 s3, s3, s4")
    a("s_mul_i32 s3, s3, 6144")
    a("s_lshl_b32 s4, s51, 8")
    a("s_add_u32 s3, s3, s4")
    a("s_lshr_b32 s4, s42, 1")
    a("s_mul_i32 s4, s4, 3072")
    a("s_add_u32 s3, s3, s4")
    a(f"s_add_u32 s55, s3, {MZ}")
    a("s_lshl_b32 s3, s42, 7")
    a("s_add_u32 s3, s3, s80")
    a("s_mul_i32 s3, s3, 1920")
    a(f"s_add_u32 s48, s3, {KVP}")
    a("s_mul_i32 s3, s81, 20")
    a("s_mul_i32 s4, s42, 5")
    a("s_add_u32 s3, s3, s4")
    a("s_mul_i32 s3, s3, 6144")
    a(f"s_add_u32 s88, s3, {MZ}")
    a("s_add_u32 s89, s88, 4096")
    a(f"s_mul_i32 s3, s42, {WLDS}")
    a(f"v_add_u32 v{VWL}, s3, v{VL16}")
    def hload(k):
        for tau in range(4):
            a(f"buffer_load_dwordx4 {ar(hslot(k)+4*tau)}, v{VH+tau}, s[20:23], s44 offen{SC}")
        a("s_addk_i32 s44, 0x1000")
    def wread(k):
        for t in range(5):
            a(f"ds_read_b128 {ar(STAGE[k%2][t])}, v{VWL} offset:{(k-6)*5120 + t*1024}")
    def mf_b(k):
        for tau in range(4):
            for t in range(5):
                A = ar(A_WD + 20*k + 4*t) if k < 6 else ar(STAGE[k%2][t])
                D = vr(ACC+(tau*5+t)*4)
                a(f"v_mfma_f32_16x16x32_bf16 {D}, {A}, {ar(hslot(k)+4*tau)}, {D}")
    VZ = T + 32
    def mreg(i, t): return A_WD + 20*i + 4*t
    def mf_list(k):
        l = []
        for tau in range(4):
            for t in range(5):
                A = ar(A_WD + 20*k + 4*t) if k < 6 else ar(STAGE[k%2][t])
                D = vr(ACC+(tau*5+t)*4)
                l.append(f"v_mfma_f32_16x16x32_bf16 {D}, {A}, {ar(hslot(k)+4*tau)}, {D}")
        return l
    def mix(mf, va, per):
        n = 0
        for m in mf:
            a(m)
            for x in va[n:n+per]: a(x)
            n += per
        for x in va[n:]: a(x)
    def scale_list(i):
        l = []
        for tau in range(4):
            F = PQ + (tau*5+i)*4
            tm = T + 8*(tau % 2) + 16
            for d in range(4):
                l.append(f"v_lshlrev_b32 v{tm+2*d}, 16, v{F+d}")
                l.append(f"v_and_b32 v{tm+2*d+1}, s78, v{F+d}")
            for d in range(4):
                if i < 2: rr = VDEN+4*tau
                elif i > 2: rr = VDEN+4*tau+1
                else: rr = VDEN+4*tau+2+(d//2)
                l.append(f"v_mul_f32 v{tm+2*d}, v{tm+2*d}, v{rr}")
                l.append(f"v_mul_f32 v{tm+2*d+1}, v{tm+2*d+1}, v{rr}")
            for d in range(4):
                l.append(f"v_cvt_pk_bf16_f32 v{F+d}, v{tm+2*d}, v{tm+2*d+1}")
        return l
    def mload(i):
        for t in range(5):
            if t < 4: a(f"buffer_load_dwordx4 {ar(mreg(i,t))}, v{VL16}, s[20:23], s88 offen offset:{t*1024}{SC}")
            else: a(f"buffer_load_dwordx4 {ar(mreg(i,t))}, v{VL16}, s[20:23], s89 offen{SC}")
        a("s_addk_i32 s88, 6144")
        a("s_addk_i32 s89, 6144")
    a(f"v_bfe_u32 v{T+12}, v{VL}, 4, 1")
    a(f"v_cmp_eq_u32 s[76:77], 1, v{T+12}")
    a("s_mov_b32 s78, 0xffff0000")
    a(f"v_and_b32 v{T+12}, 15, v{VL}")
    a(f"v_lshlrev_b32 v{T+12}, 2, v{T+12}")
    a("s_lshl_b32 s3, s80, 2")
    for tau in range(4):
        a(f"s_xor_b32 s5, s42, {tau}")
        a("s_add_u32 s5, s5, s3")
        a("s_lshl_b32 s5, s5, 6")
        a(f"s_add_u32 s{70+tau}, s5, {GOFF}")
    vm = []
    done = [0]
    def note(tag, extra=False):
        vm.append((tag, extra))
        assert len(vm) - done[0] <= 63, "vmcnt overflow"
    def cnt(tag):
        last = max(i for i, (t_, _) in enumerate(vm) if t_ == tag)
        done[0] = max(done[0], last + 1)
        return sum(1 for (t_, e) in vm[last+1:] if not e)
    class L:
        def __init__(s_, tag, text, post=()): s_.tag, s_.text, s_.post = tag, text, post
    def emit(x):
        if isinstance(x, L):
            a(x.text); note(x.tag)
            for p in x.post: a(p)
        else: a(x)
    def hl(k):
        return [L(f"h{k}", f"buffer_load_dwordx4 {ar(hslot(k)+4*tau)}, v{VH+tau}, s[20:23], s44 offen{SC}",
                  ["s_addk_i32 s44, 0x1000"] if tau == 3 else ()) for tau in range(4)]
    pql = [L("pq", f"buffer_load_dwordx4 {vr(PQ+(tau*5+i)*4)}, v{VH+tau}, s[20:23], s45 offen{SC}",
             ["s_addk_i32 s45, 0x1000"] if tau == 3 else ()) for i in range(5) for tau in range(4)]
    gl = [L("g", f"buffer_load_dword v{VG+tau}, v{T+12}, s[20:23], s{70+tau} offen{SC}") for tau in range(4)]
    zl = [L("z", f"buffer_load_dwordx4 {vr(VZ+4*i)}, v{VL16}, s[20:23], s90 offen offset:1024{SC}", ["s_addk_i32 s90, 6144"]) for i in range(5)]
    def ml_(i):
        r = []
        for t in range(5):
            if t < 4: r.append(L(f"m{i}", f"buffer_load_dwordx4 {ar(mreg(i,t))}, v{VL16}, s[20:23], s88 offen offset:{t*1024}{SC}"))
            else: r.append(L(f"m{i}", f"buffer_load_dwordx4 {ar(mreg(i,t))}, v{VL16}, s[20:23], s89 offen{SC}", ["s_addk_i32 s88, 6144", "s_addk_i32 s89, 6144"]))
        return r
    def wr(k): return [f"ds_read_b128 {ar(STAGE[k%2][t])}, v{VWL} offset:{(k-6)*5120 + t*1024}" for t in range(5)]
    def mixl(mf, other, va=(), per=4):
        n = len(mf); o = list(other); k = 0; v = 0
        for i, m in enumerate(mf):
            a(m)
            while k < len(o) and k * n < (i + 1) * len(o):
                emit(o[k]); k += 1
            for x in va[v:v+per]: a(x)
            v += per
        for x in va[v:]: a(x)
    def wait(tag, lg=None):
        a(f"s_waitcnt vmcnt({cnt(tag)})" + (f" lgkmcnt({lg})" if lg is not None else ""))
    a("s_mov_b32 s90, s89")
    a("s_waitcnt vmcnt(0)")
    wg_wait("f1", LH, 0)
    stamp(a, 7)
    for p in range(4):
        emit(L("p", f"buffer_load_dwordx4 {vr(MU+8*p)}, v{VL16}, s[20:23], s48 offen{SC}"))
        emit(L("p", f"buffer_load_dwordx4 {vr(MU+8*p+4)}, v{T+3}, s[20:23], s48 offen offset:1024{SC}"))
        if p < 3: a(f"s_add_u32 s48, s48, {32*1920}")
    for k in range(OPT['hpre']):
        for x in hl(k): emit(x)
    wait("p")
    for i in range(0, 8, 2):
        a(f"v_pk_add_f32 {vr(MU+i,2)}, {vr(MU+i,2)}, {vr(MU+8+i,2)}")
        a(f"v_pk_add_f32 {vr(MU+16+i,2)}, {vr(MU+16+i,2)}, {vr(MU+24+i,2)}")
    for i in range(0, 8, 2):
        a(f"v_pk_add_f32 {vr(MU+i,2)}, {vr(MU+i,2)}, {vr(MU+16+i,2)}")
    a(f"ds_write_b128 v{T+8}, {vr(MU)}")
    a(f"ds_write_b128 v{T+8}, {vr(MU+4)} offset:1024")
    a("s_waitcnt lgkmcnt(0)")
    a("s_barrier")
    for w in range(4):
        a(f"ds_read_b128 {vr(MU+8*w)}, v{T+9} offset:{w*2048}")
        a(f"ds_read_b128 {vr(MU+8*w+4)}, v{T+9} offset:{w*2048+16}")
    a("s_waitcnt lgkmcnt(0)")
    for i in range(0, 8, 2):
        a(f"v_pk_add_f32 {vr(MU+i,2)}, {vr(MU+i,2)}, {vr(MU+8+i,2)}")
        a(f"v_pk_add_f32 {vr(MU+16+i,2)}, {vr(MU+16+i,2)}, {vr(MU+24+i,2)}")
    for i in range(0, 8, 2):
        a(f"v_pk_add_f32 {vr(MU+i,2)}, {vr(MU+i,2)}, {vr(MU+16+i,2)}")
    for d in range(4): a(f"v_cvt_pk_bf16_f32 v{MU+8+d}, v{MU+2*d}, v{MU+2*d+1}")
    for t in range(3):
        a(f"v_mfma_f32_16x16x32_bf16 {vr(MU+16+4*t)}, {vr(MU+8)}, {ar(A_WO+4*t)}, 0")
    for t in range(3):
        a(f"v_cvt_pk_bf16_f32 v{T+16+2*t}, v{MU+16+4*t}, v{MU+17+4*t}")
        a(f"v_cvt_pk_bf16_f32 v{T+17+2*t}, v{MU+18+4*t}, v{MU+19+4*t}")
        emit(L("e", f"buffer_store_dwordx2 {vr(T+16+2*t,2)}, v{VMS}, s[20:23], s55 offen offset:{t*1024}{SC}"))
    stamp(a, 8)
    pre = [x for k in range(OPT['hpre'], 6) for x in hl(k)]
    wait("h0"); mixl(mf_list(0), pre)
    wait("h1"); mixl(mf_list(1), hl(6) + pql[0:2])
    wait("h2"); mixl(mf_list(2), hl(7) + pql[2:4])
    wait("e")
    a("s_barrier")
    w0([lambda: flag_store(a, "s56")], "p2_sig2"); note("fl", True)
    stamp(a, 9)
    wait("h3"); mixl(mf_list(3), pql[4:12])
    wait("h4"); mixl(mf_list(4), pql[12:20] + wr(6))
    w0([LM], "p2_lm"); note("lm", True)
    wait("h5"); mixl(mf_list(5), gl + hl(8) + wr(7))
    wait("h6", 5); mixl(mf_list(6), hl(9))
    wait("h7", 0); mixl(mf_list(7), wr(8) + hl(10))
    stamp(a, 10)
    wg_wait("fm", LM, sum(1 for (t_, e) in vm[[t_ for t_, _ in vm].index("lm")+1:] if not e))
    stamp(a, 11)
    for x in zl: emit(x)
    wait("h8", 0); mixl(mf_list(8), wr(9) + hl(11) + ml_(0))
    wait("h9", 0); mixl(mf_list(9), wr(10) + ml_(1) + ml_(2))
    wait("z")
    den = []
    for i in range(5):
        for tau in range(4):
            C = vr(VDEN+4*tau) if i else "0"
            den.append(f"v_mfma_f32_16x16x32_bf16 {vr(VDEN+4*tau)}, {vr(VZ+4*i)}, {vr(PQ+(tau*5+i)*4)}, {C}")
    mixl(den, wr(11) + ml_(3) + ml_(4))
    rl = []
    for tau in range(4):
        for e in range(2): rl.append(f"v_add_f32 v{VDEN+4*tau+e}, {EPS}, v{VDEN+4*tau+e}")
    for tau in range(4):
        for e in range(2): rl.append(f"v_rcp_f32 v{VDEN+4*tau+e}, v{VDEN+4*tau+e}")
    for tau in range(4):
        for e in range(2): rl.append(f"v_mul_f32 v{VDEN+4*tau+e}, v{VDEN+4*tau+e}, v{VG+tau}")
    for tau in range(4):
        rl.append(f"v_cndmask_b32 v{VDEN+4*tau+2}, v{VDEN+4*tau}, v{VDEN+4*tau+1}, s[76:77]")
        rl.append(f"v_cndmask_b32 v{VDEN+4*tau+3}, v{VDEN+4*tau+1}, v{VDEN+4*tau}, s[76:77]")
    for tau in range(4):
        rl.append(f"v_sub_f32 v{T+2*tau}, 1.0, v{VG+tau}")
        rl.append(f"v_sub_f32 v{T+2*tau+1}, 1.0, v{VG+tau}")
    a("s_waitcnt lgkmcnt(0)")
    m10 = mf_list(10)
    for x in m10[:8]: a(x)
    mix(m10[8:], rl, 4)
    stamp(a, 12)
    wait("h11")
    mix(mf_list(11), scale_list(0), 4)
    sl1 = scale_list(1)
    for x in sl1[:20]: a(x)
    for tau in range(4):
        for i in range(0, 20, 2):
            a(f"v_pk_mul_f32 {vr(ACC+tau*20+i,2)}, {vr(ACC+tau*20+i,2)}, {vr(T+2*tau,2)}")
    for i in range(5):
        wait(f"m{i}")
        ml = []
        for tau in ([1, 2, 3, 0] if i == 4 else range(4)):
            for t in range(5):
                A = ACC+(tau*5+t)*4
                ml.append(f"v_mfma_f32_16x16x32_bf16 {vr(A)}, {ar(mreg(i,t))}, {vr(PQ+(tau*5+i)*4)}, {vr(A)}")
        mix(ml, sl1[20:] if i == 0 else scale_list(i+1) if i < 4 else [], 4)
    stamp(a, 13)
    for tau in range(1, 4):
        a(f"s_xor_b32 s3, s42, {tau}")
        a(f"s_mul_i32 s3, s3, {WLDS}")
        a(f"v_add_u32 v{VWA+tau}, s3, v{VL16}")
    for tau in range(1, 4):
        for t in range(5):
            a(f"ds_write_b128 v{VWL}, {vr(ACC+(tau*5+t)*4)} offset:{(tau-1)*5120 + t*1024}")
    a("s_waitcnt lgkmcnt(0)")
    a("s_barrier")
    for tau in range(1, 4):
        for t in range(5):
            a(f"ds_read_b128 {vr(PQ+20*(tau-1)+4*t)}, v{VWA+tau} offset:{(tau-1)*5120 + t*1024}")
    a("s_lshl_b32 s3, s80, 6")
    a("s_lshl_b32 s4, s42, 4")
    a("s_add_u32 s3, s3, s4")
    a("s_mul_i32 s3, s3, 1280")
    a("s_mul_i32 s4, s81, 160")
    a("s_add_u32 s3, s3, s4")
    a(f"v_and_b32 v{T}, 15, v{VL}")
    a(f"v_mul_u32_u24 v{T}, 1280, v{T}")
    a(f"v_lshrrev_b32 v{T+1}, 4, v{VL}")
    a(f"v_lshl_add_u32 v{T+2}, v{T+1}, 4, v{T}")
    a(f"v_lshl_add_u32 v{T+3}, v{T+1}, 3, v{T}")
    for src in range(3):
        a(f"s_waitcnt lgkmcnt({10-5*src})")
        for i in range(0, 20, 2):
            a(f"v_pk_add_f32 {vr(ACC+i,2)}, {vr(ACC+i,2)}, {vr(PQ+20*src+i,2)}")
    for i in range(10): a(f"v_cvt_pk_bf16_f32 v{T+8+i}, v{ACC+2*i}, v{ACC+2*i+1}")
    a(f"buffer_store_dwordx4 {vr(T+8)}, v{T+2}, s[8:11], s3 offen")
    a(f"buffer_store_dwordx4 {vr(T+12)}, v{T+2}, s[8:11], s3 offen offset:64")
    a(f"buffer_store_dwordx2 {vr(T+16,2)}, v{T+3}, s[8:11], s3 offen offset:128")
    stamp(a, 14)
    stamp_flush(a, 15)

HDR = open(f'cdna_kernels/{NAME}.s.ref').read().split('; @launch')[0]
def finish(a):
    lines, n = hazard.pad(a.lines)
    bad = hazard.check_branches(lines)
    for b in bad: print("BRANCH HAZARD:", b, file=sys.stderr)
    print("hazard nops inserted:", n, file=sys.stderr)
    return "\n".join(lines) + "\n"

out = HDR
out += f"; @launch grid=(256,1,1) block=(256,1,1) lds={LDS1}\n"
out += '.amdgcn_target "amdgcn-amd-amdhsa--gfx950"\n'
out += kernel_begin(NAME + "_kernel") + finish(gen())
out += kernel_desc(NAME + "_kernel", 512, 256)
open(sys.argv[1], "w").write(out)
```
